```python
import torch

def _softmax(x, axis=-1):
    return torch.softmax(x, dim=axis)
def _gelu(x):
    return torch.nn.functional.gelu(x, approximate="tanh")
def _silu(x):
    return torch.nn.functional.silu(x)
def _sigmoid(x):
    return torch.sigmoid(x)
def _layernorm(x, axis=-1, eps=1e-5):
    m = x.mean(dim=axis, keepdim=True)
    v = x.var(dim=axis, keepdim=True, unbiased=False)
    return (x - m) / torch.sqrt(v + eps)
def _scatter_add(tgt, idx, src, axis=0):
    return tgt.clone().index_add_(axis, idx, src)
def _segment_sum(src, seg, n):
    out = torch.zeros((n,) + src.shape[1:], dtype=src.dtype)
    return out.index_add_(0, seg, src)
def _pad(x, pw):
    flat = tuple(v for pair in reversed(pw) for v in pair)
    return torch.nn.functional.pad(x, flat)

kernel_name = 'gated_mix__ssm_conv_s5__swiglu_ffn__prompt'

def setup_inputs():

    _w = (lambda a: (lambda t: t.to(torch.bfloat16) if t.is_floating_point() else t)(torch.as_tensor(a)))
    def _A_setup():
        B, S, D = 1, 2048, 576
        P = D
        Lambda_re = -0.5 * (lambda _x: torch.exp(torch.as_tensor(_x)))((lambda *s: torch.randn(*s, dtype=torch.bfloat16) * 0.2)(P))
        Lambda_im = (lambda *s: torch.randn(*s, dtype=torch.bfloat16) * 0.4)(P) * 1.0
        B_re = (lambda *s: torch.randn(*s, dtype=torch.bfloat16) * 0.2)(P, D) * (D ** -0.5)
        B_im = (lambda *s: torch.randn(*s, dtype=torch.bfloat16) * 0.2)(P, D) * (D ** -0.5)
        C_re = (lambda *s: torch.randn(*s, dtype=torch.bfloat16) * 0.2)(D, P) * (P ** -0.5)
        C_im = (lambda *s: torch.randn(*s, dtype=torch.bfloat16) * 0.2)(D, P) * (P ** -0.5)
        log_dt = (lambda *s: torch.randn(*s, dtype=torch.bfloat16) * 0.2)(P) * 0.3 - 2.0
        Dskip = (lambda *s: torch.randn(*s, dtype=torch.bfloat16) * 0.05)(D)
        return {
            "x": _w((lambda *s: torch.randn(*s, dtype=torch.bfloat16) * 0.05)(B, S, D)),
            "Lambda_re": _w(Lambda_re),
            "Lambda_im": _w(Lambda_im),
            "B_re": _w(B_re),
            "B_im": _w(B_im),
            "C_re": _w(C_re),
            "C_im": _w(C_im),
            "log_dt": _w(log_dt),
            "Dskip": _w(Dskip),
        }
    _A_in = _A_setup()

    def _B_setup():
        B, S, D, F = 1, 2048, 576, 4608
        return {
            "x": _w((lambda *s: torch.randn(*s, dtype=torch.bfloat16) * 0.05)(B, S, D)),
            "w_gate": _w((lambda *s: torch.randn(*s, dtype=torch.bfloat16) * 0.05)(D, F)),
            "w_up": _w((lambda *s: torch.randn(*s, dtype=torch.bfloat16) * 0.05)(D, F)),
            "w_down": _w((lambda *s: torch.randn(*s, dtype=torch.bfloat16) * 0.05)(F, D)),
        }
    _B_in = _B_setup()

    return {
        "A_x": _A_in["x"],
        "A_Lambda_re": _A_in["Lambda_re"],
        "A_Lambda_im": _A_in["Lambda_im"],
        "A_B_re": _A_in["B_re"],
        "A_B_im": _A_in["B_im"],
        "A_C_re": _A_in["C_re"],
        "A_C_im": _A_in["C_im"],
        "A_log_dt": _A_in["log_dt"],
        "A_Dskip": _A_in["Dskip"],
        "B_x": _B_in["x"],
        "B_w_gate": _B_in["w_gate"],
        "B_w_up": _B_in["w_up"],
        "B_w_down": _B_in["w_down"],
        "gate_w": _w((lambda *s: torch.randn(*s, dtype=torch.bfloat16) * 0.05)(576) * 16.0),
    }

def reference(A_x, A_Lambda_re, A_Lambda_im, A_B_re, A_B_im, A_C_re, A_C_im, A_log_dt, A_Dskip, B_x, B_w_gate, B_w_up, B_w_down, gate_w):
    def _A_ref(x, Lambda_re, Lambda_im, B_re, B_im, C_re, C_im, log_dt, Dskip):
        Bsz, L, H = x.shape
        Lam = Lambda_re + 1j * Lambda_im
        Bmat = B_re + 1j * B_im
        Cmat = C_re + 1j * C_im
        dt = torch.exp(log_dt)
        Lam_bar = torch.exp(dt * Lam)
        B_bar = ((Lam_bar - 1.0) / Lam)[:, None] * Bmat
        Bu = torch.einsum("bld,pd->blp", x + 0j, B_bar)
        h = torch.zeros_like(Bu[:, 0, :])
        hs = []
        for t in range(L):
            h = Lam_bar[None, :] * h + Bu[:, t, :]
            hs.append(h)
        hseq = torch.stack(hs, 1)
        y = 2.0 * torch.einsum("blp,dp->bld", hseq, Cmat).real + x * Dskip[None, None, :]
        return y

    def _B_ref(x, w_gate, w_up, w_down):
        g = _silu(x @ w_gate)
        u = x @ w_up
        return (g * u) @ w_down

    x = A_x
    g = _sigmoid((x * gate_w).sum(-1, keepdims=True))
    a = _A_ref(x, A_Lambda_re, A_Lambda_im, A_B_re, A_B_im, A_C_re, A_C_im, A_log_dt, A_Dskip)
    b = _B_ref(x, B_w_gate, B_w_up, B_w_down)
    return g * a + (1 - g) * b
```

```python
import re

_REG = re.compile(r'\b([vas])(\d+)\b|\b([vas])\[(\d+):(\d+)\]')

def regs_of(txt):
    out = set()
    for m in _REG.finditer(txt):
        if m.group(1):
            out.add((m.group(1), int(m.group(2))))
        else:
            for i in range(int(m.group(4)), int(m.group(5)) + 1):
                out.add((m.group(3), i))
    for nm in ('vcc', 'exec', 'm0', 'scc'):
        if re.search(r'\b' + nm + r'(_lo|_hi)?\b', txt):
            out.add((nm, 0))
    return out

TRANS = ('v_exp_f32', 'v_log_f32', 'v_rcp_f32', 'v_rsq_f32', 'v_sqrt_f32', 'v_sin_f32', 'v_cos_f32', 'v_rcp_iflag_f32')

class Ins:
    __slots__ = ('txt', 'op', 'cls', 'wr', 'rd', 'srcc', 'passes', 'states', 'dpp', 'wide_store_data')
    pass

def split_ops(s):
    out, cur, depth = [], '', 0
    for ch in s:
        if ch in '[(': depth += 1
        if ch in '])': depth -= 1
        if ch == ',' and depth == 0:
            out.append(cur.strip()); cur = ''
        else:
            cur += ch
    if cur.strip(): out.append(cur.strip())
    return out

def classify(txt):
    i = Ins(); i.txt = txt
    t = txt.split(';')[0].strip()
    parts = t.split(None, 1)
    op = parts[0]; rest = parts[1] if len(parts) > 1 else ''
    i.op = op; i.srcc = set(); i.passes = 0; i.states = 1; i.dpp = False; i.wide_store_data = set()
    ops = split_ops(rest)
    wr, rd = set(), set()
    if op == 's_nop':
        i.cls = 'nop'; i.states = int(rest, 0) + 1
    elif op.startswith('v_mfma'):
        i.cls = 'mfma'
        wr = regs_of(ops[0]); rd = regs_of(ops[1]) | regs_of(ops[2]) | regs_of(ops[3]); i.srcc = regs_of(ops[3])
        i.passes = 8 if '32x32x16' in op else 4
    elif op.startswith('v_cmp'):
        i.cls = 'valu'; wr = regs_of(ops[0]); rd = set().union(*[regs_of(o) for o in ops[1:]])
        if op.startswith('v_cmpx'): wr.add(('exec', 0))
    elif op.startswith('v_readfirstlane') or op.startswith('v_readlane'):
        i.cls = 'valu'; wr = regs_of(ops[0]); rd = set().union(*[regs_of(o) for o in ops[1:]])
    elif op.startswith('v_permlane'):
        i.cls = 'valu'; wr = regs_of(ops[0]) | regs_of(ops[1]); rd = set(wr)
    elif op.startswith('v_'):
        i.cls = 'valu'
        wr = regs_of(ops[0]); rd = set().union(*[regs_of(o) for o in ops[1:]]) if len(ops) > 1 else set()
        if op.startswith(('v_add_co', 'v_sub_co', 'v_addc_co', 'v_subb_co', 'v_mad_u64', 'v_div_scale')):
            wr |= regs_of(ops[1]); rd = set().union(*[regs_of(o) for o in ops[2:]])
        if op.startswith(('v_fmac', 'v_dot2c', 'v_pk_fmac', 'v_writelane')): rd |= wr
        if op.startswith('v_cndmask') and len(ops) == 3: rd.add(('vcc', 0))
        if 'dpp' in op or 'row_' in rest or 'quad_perm' in rest: i.dpp = True
    elif op.startswith(('buffer_', 'global_')):
        i.cls = 'vmem'
        allr = set().union(*[regs_of(o) for o in ops])
        if ' lds' in (' ' + rest + ' ') and re.search(r'\blds\b', rest) or 'load_lds' in op:
            rd = allr | {('m0', 0)}
        elif 'load' in op:
            wr = regs_of(ops[0]); rd = set().union(*[regs_of(o) for o in ops[1:]])
        elif 'atomic' in op:
            rd = allr
            if re.search(r'\bsc0\b', rest): wr = regs_of(ops[0])
        else:
            rd = allr
            if op.endswith(('x3', 'x4')):
                i.wide_store_data = regs_of(ops[0] if op.startswith('buffer_') else ops[1])
    elif op.startswith('ds_'):
        i.cls = 'ds'
        if 'read' in op or 'permute' in op or 'swizzle' in op:
            wr = regs_of(ops[0]); rd = set().union(*[regs_of(o) for o in ops[1:]])
        else:
            rd = set().union(*[regs_of(o) for o in ops])
    elif op.startswith('s_'):
        i.cls = 'salu'
        if op.startswith(('s_waitcnt', 's_barrier', 's_branch', 's_cbranch', 's_endpgm', 's_setprio', 's_sleep')):
            pass
        elif op.startswith('s_cmp') or op.startswith('s_bitcmp'):
            rd = set().union(*[regs_of(o) for o in ops])
        elif op.startswith(('s_load', 's_buffer_load', 's_memtime', 's_memrealtime')):
            i.cls = 'smem'; wr = regs_of(ops[0]); rd = set().union(*[regs_of(o) for o in ops[1:]]) if len(ops) > 1 else set()
        else:
            wr = regs_of(ops[0]) if ops else set(); rd = set().union(*[regs_of(o) for o in ops[1:]]) if len(ops) > 1 else set()
            if 'saveexec' in op: wr.add(('exec', 0))
    else:
        raise ValueError('unknown instr: ' + txt)
    i.wr, i.rd = wr, rd
    return i

def vec(s): return {r for r in s if r[0] in 'va' and len(r[0]) == 1}
def sg(s): return {r for r in s if r[0] == 's' or r[0] == 'vcc'}

def required(p, c):
    n = 0
    if p.cls == 'valu':
        if c.cls == 'mfma' and vec(p.wr) & c.rd: n = max(n, 2)
        if c.cls == 'mfma' and ('exec', 0) in p.wr: n = max(n, 4)
        if c.cls == 'vmem' and sg(p.wr) & c.rd: n = max(n, 5)
        if c.cls == 'valu':
            if sg(p.wr) & c.rd:
                n = max(n, 4 if c.op.startswith(('v_readlane', 'v_writelane')) else 2)
            if c.op.startswith(('v_readfirstlane', 'v_readlane')) and vec(p.wr) & c.rd: n = max(n, 1)
            if c.op.startswith('v_permlane') and vec(p.wr) & c.rd: n = max(n, 2)
            if c.dpp and vec(p.wr) & c.rd: n = max(n, 2)
            if c.dpp and ('exec', 0) in p.wr: n = max(n, 5)
            if p.op.replace('_e32', '').replace('_e64', '') in TRANS and vec(p.wr) & c.rd: n = max(n, 1)
            if ('exec', 0) in p.wr and c.op.startswith(('v_readlane', 'v_readfirstlane', 'v_writelane', 'v_permlane')): n = max(n, 4)
            if 'op_sel' in p.txt and not p.op.startswith('v_pk') and vec(p.wr) & (c.rd | c.wr): n = max(n, 1)
    if p.cls == 'salu':
        if ('m0', 0) in p.wr and c.cls in ('vmem', 'ds') and ('m0', 0) in c.rd: n = max(n, 1)
    if p.cls == 'vmem' and p.wide_store_data:
        if p.wide_store_data & c.wr: n = max(n, 2 if c.cls in ('valu', 'mfma') else 1)
    if p.cls == 'mfma':
        big = p.passes == 8
        if c.cls == 'mfma':
            if p.wr & c.srcc:
                if not (p.wr == c.srcc and p.passes == c.passes): n = max(n, 10 if big else 6)
            if p.wr & (c.rd - c.srcc) or (p.wr & c.rd and not (p.wr & c.srcc)): n = max(n, 12 if big else 8)
            if p.wr & c.wr and not (p.wr == c.srcc): n = max(n, 10 if big else 6)
        elif c.cls in ('valu', 'vmem', 'ds'):
            if p.wr & (c.rd | c.wr): n = max(n, 12 if big else 8)
            if c.cls == 'valu' and p.srcc & c.wr: n = max(n, 7 if big else 3)
    return n

class Asm:
    def __init__(self):
        self.lines = []
        self.hist = []
        self.vm = []
        self.lg = []
        self.vm_done = 0
        self.lg_done = 0
        self.nops = 0
    def raw(self, s):
        self.lines.append(s)
    def comment(self, s):
        self.lines.append('    ; ' + s)
    def label(self, s):
        self.lines.append(s + ':')
    def fence(self):
        self.I('s_nop 7'); self.I('s_nop 3')
        self.hist = []
    def I(self, txt, tag=None):
        for t in txt.split('\n'):
            t = t.strip()
            if not t: continue
            ins = classify(t)
            need = 0; dist = 0
            for p in reversed(self.hist):
                r = required(p, ins)
                if r - dist > need: need = r - dist
                dist += p.states
                if dist >= 20: break
            while need > 0:
                k = min(need, 16)
                n = classify(f's_nop {k-1}')
                self.lines.append(f'    s_nop {k-1}'); self.hist.append(n); need -= k; self.nops += 1
            self.lines.append('    ' + t)
            self.hist.append(ins)
            if len(self.hist) > 40: self.hist = self.hist[-30:]
            if ins.cls == 'vmem': self.vm.append(tag)
            elif ins.cls == 'ds': self.lg.append(tag)
    def _last(self, q, tag):
        idx = [i for i, t in enumerate(q) if t == tag or (isinstance(tag, (list, tuple, set)) and not isinstance(t, (list,)) and isinstance(tag, (list, set)) and t in tag)]
        assert idx, f'tag {tag} not found'
        return idx[-1]
    def need_vm(self, tag):
        i = self._last(self.vm, tag)
        if i < self.vm_done: return None
        return len(self.vm) - 1 - i
    def need_lg(self, tag):
        i = self._last(self.lg, tag)
        if i < self.lg_done: return None
        return len(self.lg) - 1 - i
    def wait(self, vm=None, lg=None):
        parts = []
        if vm is not None:
            n = self.need_vm(vm)
            if n is not None:
                n = min(n, 63); parts.append(f'vmcnt({n})'); self.vm_done = len(self.vm) - n
        if lg is not None:
            n = self.need_lg(lg)
            if n is not None:
                n = min(n, 15); parts.append(f'lgkmcnt({n})'); self.lg_done = len(self.lg) - n
        if parts: self.I('s_waitcnt ' + ' '.join(parts))
    def wait_all(self, vm=True, lg=True):
        parts = []
        if vm: parts.append('vmcnt(0)'); self.vm_done = len(self.vm)
        if lg: parts.append('lgkmcnt(0)'); self.lg_done = len(self.lg)
        self.I('s_waitcnt ' + ' '.join(parts))
    def lg_is_done(self, tag):
        return self.need_lg(tag) is None
    def text(self):
        return '\n'.join(self.lines)

def srd(a, sd, sptr, nbytes):
    a.I(f's_mov_b32 s{sd}, s{sptr}')
    a.I(f's_and_b32 s{sd+1}, s{sptr+1}, 0xffff')
    a.I(f's_mov_b32 s{sd+2}, {nbytes}')
    a.I(f's_mov_b32 s{sd+3}, 0x20000')

def kd(name, nv, accum, ns=102):
    return f""".p2align 6
.amdhsa_kernel {name}
  .amdhsa_next_free_vgpr {nv}
  .amdhsa_next_free_sgpr {ns}
  .amdhsa_accum_offset {accum}
  .amdhsa_group_segment_fixed_size 0
  .amdhsa_kernarg_size 136
  .amdhsa_user_sgpr_count 2
  .amdhsa_user_sgpr_kernarg_segment_ptr 1
  .amdhsa_system_sgpr_workgroup_id_x 1
.end_amdhsa_kernel"""
```

```python
from asmlib import *
from layout import *

def gen_k1(name, prof=False, use_pk=False, store_aux='sc1', PD=6):
    a = Asm()
    I = a.I
    U = 16384
    XB = lambda k: 65536 + k * 32768
    TB = 163840 - 18 * 2304
    wmap = {0: (0, -1), 1: (1, -1), 2: (2, -1), 3: (3, -1), 4: (0, 2), 5: (1, 3), 6: (2, 4), 7: (3, 5), 8: (0, 6),
            9: (1, 7), 10: (4, 7), 11: (5, 7), 12: (2, 8), 13: (6, 8), 14: (3, 9), 15: (0, 10), 16: (1, 11), 17: (4, 12)}
    tfill = {9: [0, 1], 10: [2, 3], 11: [4]}
    BLAST = 15
    vRA = [1, 2, 3, 4]
    vWG, vWU, vX0, vX1, vXR, vTMP, vST, vTD, vTR = 5, 6, 7, 8, 9, 10, 11, 12, 13
    FR = 16
    ACC = 48
    sW, sXO, sWO, sMW, sMX, sTC, sH0, sHT = 24, 25, 26, 27, 28, 29, 30, 31
    sNL, sONE = 32, 34
    sT4, sTM = 36, 37
    sTS = 40
    stamps = []
    def stamp():
        if prof:
            n = len(stamps)
            r = 64 + 2 * (n % 4); stamps.append(r)
            if n >= 4: I(f'v_writelane_b32 v15, s{r}, {n-4}')
            I(f's_memtime s[{r}:{r+1}]')

    a.raw(f'.p2align 8\n.globl {name}\n.type {name},@function\n{name}:')
    I('s_cmp_ge_u32 s2, 256')
    I(f's_cbranch_scc1 {name}_done')
    stamp()
    I(f's_load_dwordx2 s[4:5], s[0:1], {A_X}')
    I(f's_load_dwordx4 s[44:47], s[0:1], {A_WG}')
    I(f's_load_dwordx2 s[6:7], s[0:1], {A_WS}')
    I('v_lshrrev_b32 v14, 6, v0')
    I('v_and_b32 v0, 63, v0')
    I(f'v_readfirstlane_b32 s{sW}, v14')
    I('s_and_b32 s48, s2, 1')
    I('s_lshl_b32 s48, s48, 2')
    I('s_bfe_u32 s49, s2, 0x20003')
    I('s_add_u32 s48, s48, s49')
    I('s_bfe_u32 s49, s2, 0x20001')
    I('s_lshr_b32 s50, s2, 5')
    I('s_mul_i32 s51, s49, 18')
    I('s_lshl_b32 s52, s50, 1')
    I('s_add_u32 s52, s52, s51')
    I('s_lshr_b32 s53, s50, 2')
    I('s_add_u32 s53, s53, s51')
    I('s_add_u32 s53, s53, 16')
    I('s_lshl_b32 s53, s53, 2')
    I('s_and_b32 s54, s50, 3')
    I('s_add_u32 s53, s53, s54')
    I(f's_lshl_b32 s{sTC}, s53, 5')
    I('s_lshl_b32 s48, s48, 3')
    I(f's_add_u32 s48, s48, s{sW}')
    I(f's_mul_i32 s{sXO}, s48, {32*1152}')
    I(f's_mul_i32 s{sWO}, s{sW}, {8*9216}')
    I('s_lshl_b32 s55, s52, 7')
    I(f's_add_u32 s{sWO}, s{sWO}, s55')
    I(f's_lshl_b32 s{sMW}, s{sW}, 10')
    I(f's_lshl_b32 s{sMX}, s{sW}, 12')
    I(f's_mul_i32 s55, s48, {288*1024}')
    I('s_lshl_b32 s56, s52, 12')
    I(f's_add_u32 s{sH0}, s55, s56')
    I('s_lshl_b32 s56, s53, 10')
    I(f's_add_u32 s{sHT}, s55, s56')
    I(f's_mov_b32 s{sNL}, 0xbfb8aa3b\ns_mov_b32 s{sNL+1}, 0xbfb8aa3b')
    I(f's_mov_b32 s{sONE}, 1.0\ns_mov_b32 s{sONE+1}, 1.0')
    I(f's_lshr_b32 s{sTM}, s{sW}, 1')
    I(f's_cmp_lt_u32 s{sW}, 4')
    I(f's_cselect_b32 s{sT4}, 16, 12')
    I(f's_add_u32 s{sT4}, s{sT4}, s{sTM}')
    I('v_lshrrev_b32 v14, 3, v0')
    I('v_and_b32 v15, 7, v0')
    I('v_lshrrev_b32 v16, 4, v0')
    I('v_xor_b32 v17, v15, v16')
    I('v_lshlrev_b32 v17, 4, v17')
    I('v_mul_u32_u24 v18, 1152, v14')
    I(f'v_add_u32 v{vX0}, v18, v17')
    I(f'v_xor_b32 v{vX1}, 64, v{vX0}')
    I('v_and_b32 v17, 1, v16')
    I('v_lshlrev_b32 v17, 5, v17')
    I('v_lshlrev_b32 v18, 4, v15')
    I('v_xor_b32 v17, v17, v18')
    I('v_mul_u32_u24 v18, 9216, v14')
    I(f'v_add_u32 v{vWG}, v18, v17')
    I(f'v_xor_b32 v{vWU}, 64, v{vWG}')
    I('v_lshrrev_b32 v17, 1, v0')
    I('v_mul_u32_u24 v17, 9216, v17')
    I('v_and_b32 v18, 1, v0')
    I('v_lshlrev_b32 v18, 4, v18')
    I(f'v_add_u32 v{vTD}, v17, v18')
    I('v_and_b32 v17, 31, v0')
    I('v_lshrrev_b32 v18, 5, v0')
    I('v_bfe_u32 v19, v0, 1, 3')
    I('v_xor_b32 v19, v19, v18')
    I('v_lshlrev_b32 v19, 4, v19')
    I('v_lshlrev_b32 v17, 7, v17')
    I('v_add_u32 v17, v17, v19')
    I(f's_add_u32 s57, s{sMX}, {XB(0)}')
    I(f'v_add_u32 v{vXR}, s57, v17')
    I('v_and_b32 v17, 1, v16')
    I('v_bfe_u32 v19, v0, 2, 2')
    I('v_lshl_add_u32 v20, v18, 3, v19')
    I('v_and_b32 v21, 3, v0')
    I('v_lshlrev_b32 v21, 3, v21')
    I('v_lshlrev_b32 v22, 13, v17')
    I('v_lshl_add_u32 v22, v20, 7, v22')
    I('v_add_u32 v22, v22, v21')
    I('v_bfe_u32 v23, v0, 3, 1')
    I('v_lshl_add_u32 v23, v17, 1, v23')
    I('v_lshlrev_b32 v23, 5, v23')
    I(f'v_add_u32 v{vRA[0]}, v22, v23')
    for b in range(1, 4):
        I(f'v_xor_b32 v{vRA[b]}, {32*b}, v{vRA[0]}')
    I('v_mul_u32_u24 v22, 1152, v17')
    I('v_lshl_add_u32 v22, v20, 5, v22')
    I('v_add_u32 v22, v22, v21')
    I(f'v_add_u32 v{vTR}, {TB}, v22')
    I(f'v_lshlrev_b32 v{vST}, 4, v0')
    I('s_waitcnt lgkmcnt(0)')
    srd(a, 8, 4, 2048 * 1152)
    srd(a, 12, 44, 576 * 9216)
    srd(a, 16, 46, 576 * 9216)
    srd(a, 20, 6, WS_USED)
    I(f's_bitcmp1_b32 s{sW}, 0')
    I(f's_cselect_b32 s{sTS}, s46, s44')
    I(f's_cselect_b32 s{sTS+1}, s17, s13')
    I(f's_mov_b32 s{sTS+2}, {576*9216}')
    I(f's_mov_b32 s{sTS+3}, 0x20000')
    I(f's_mul_i32 s58, s{sTM}, 2304')
    I(f's_and_b32 s59, s{sW}, 1')
    I('s_mul_i32 s59, s59, 1152')
    I(f's_add_u32 s59, s59, {TB}')
    I('s_add_u32 s58, s58, s59')
    I(f's_mul_i32 s60, s{sT4}, 2304')
    I('s_add_u32 s60, s60, s59')
    I(f's_mul_i32 s61, s{sTM}, {32*9216}')
    I(f's_add_u32 s61, s61, s{sTC}')
    I(f's_mul_i32 s62, s{sT4}, {32*9216}')
    I(f's_add_u32 s62, s62, s{sTC}')

    def dma_w(q):
        g, s = divmod(q, 9)
        unit = wmap[q][0]
        out = []
        for m in range(2):
            out.append([(f's_add_u32 m0, s{sMW}, {unit*U + m*8192}', None),
                        (f's_add_u32 s38, s{sWO}, {64*s*9216 + 128*g}', None) if m == 0 else None,
                        (f'buffer_load_dwordx4 v{vWG if m == 0 else vWU}, s[{12+4*m}:{15+4*m}], s38 offen lds', ('W', q))])
        return [[x for x in o if x] for o in out]
    def dma_x(s):
        out = []
        for i in range(4):
            out.append([(f's_add_u32 m0, s{sMX}, {XB(s % 3) + i*1024}', None),
                        (f's_add_u32 s39, s{sXO}, {8*i*1152 + 128*s}', None),
                        (f'buffer_load_dwordx4 v{vX0 if i % 2 == 0 else vX1}, s[8:11], s39 offen lds', ('X', s))])
        return out
    def dma_t(i):
        if i < 4:
            return [[(f's_add_u32 m0, s58, {4*i*2304}', None), (f's_add_u32 s39, s61, {4*i*32*9216}', None),
                     (f'buffer_load_dwordx4 v{vTD}, s[{sTS}:{sTS+3}], s39 offen lds', ('T', 0))]]
        return [[('s_mov_b32 m0, s60', None), ('s_nop 0', None),
                 (f'buffer_load_dwordx4 v{vTD}, s[{sTS}:{sTS+3}], s62 offen lds', ('T', 0))]]
    def emit_groups(gs):
        for g in gs:
            for t, tag in g: I(t, tag)

    emit_groups(dma_x(0)); emit_groups(dma_w(0)); emit_groups(dma_w(1)); emit_groups(dma_x(1))
    emit_groups(dma_w(2)); emit_groups(dma_x(2)); emit_groups(dma_w(3))
    stamp()

    seq = []
    for q in range(18):
        g, s = divmod(q, 9)
        for b in range(4):
            for c in range(4):
                seq.append(dict(tick=q, tile=b, k=4*s + c, first=(s == 0 and c == 0), last=(s == 8 and c == 3), q=q, c=c, b=b, g=g))
    for k in range(36):
        seq.append(dict(tick=18, tile=0, k=k, first=(k == 0), last=(k == 35), q=None, c=k, b=0, g=2))
    N = len(seq)

    def epilogue(tile, g):
        T = ACC + 16 * tile
        L = []
        if use_pk:
            for i in (0, 2, 4, 6): L.append(f'v_pk_mul_f32 v[{T+8+i}:{T+9+i}], v[{T+i}:{T+i+1}], v[{T+8+i}:{T+9+i}]')
            for i in (0, 2, 4, 6): L.append(f'v_pk_mul_f32 v[{T+i}:{T+i+1}], v[{T+i}:{T+i+1}], s[{sNL}:{sNL+1}]')
            for i in range(8): L.append(f'v_exp_f32 v{T+i}, v{T+i}')
            for i in (0, 2, 4, 6): L.append(f'v_pk_add_f32 v[{T+i}:{T+i+1}], v[{T+i}:{T+i+1}], s[{sONE}:{sONE+1}]')
            for i in range(8): L.append(f'v_rcp_f32 v{T+i}, v{T+i}')
            for i in (0, 2, 4, 6): L.append(f'v_pk_mul_f32 v[{T+i}:{T+i+1}], v[{T+i}:{T+i+1}], v[{T+8+i}:{T+9+i}]')
        else:
            for i in range(8):
                L.append(f'v_mul_f32 v{T+8+i}, v{T+i}, v{T+8+i}')
                L.append(f'v_mul_f32 v{T+i}, s{sNL}, v{T+i}')
            for i in range(8):
                L.append(f'v_exp_f32 v{T+i}, v{T+i}')
            for i in range(8):
                L.append(f'v_add_f32 v{T+i}, 1.0, v{T+i}')
            for i in range(8):
                L.append(f'v_rcp_f32 v{T+i}, v{T+i}')
            for i in range(8):
                L.append(f'v_mul_f32 v{T+i}, v{T+i}, v{T+8+i}')
        for i in range(4): L.append(f'v_cvt_pk_bf16_f32 v{T+8+i}, v{T+2*i}, v{T+2*i+1}')
        if g < 2:
            L.append(f's_add_u32 s63, s{sH0}, {(4*g + tile)*1024}')
            L.append(f'buffer_store_dwordx4 v[{T+8}:{T+11}], v{vST}, s[20:23], s63 offen {store_aux}')
        else:
            L.append(f'buffer_store_dwordx4 v[{T+8}:{T+11}], v{vST}, s[20:23], s{sHT} offen {store_aux}')
        return L
    def cost(t):
        return 8 if t.startswith(('v_exp', 'v_rcp')) else 4

    cur_unit = [0]
    def issue_reads(n):
        it = seq[n]; buf = FR + 4 * (n % 8)
        if it['q'] is not None:
            for e in range(2):
                I(f'ds_read_b64_tr_b16 v[{buf+2*e}:{buf+2*e+1}], v{vRA[it["b"]]} offset:{(16*it["c"] + 4*e)*128}', ('F', n))
        else:
            k = it['k']
            for e in range(2):
                I(f'ds_read_b64_tr_b16 v[{buf+2*e}:{buf+2*e+1}], v{vTR} offset:{(k >> 1)*2304 + (k & 1)*512 + e*128}', ('F', n))

    fill = []
    epi = []
    pend_x = {}
    def tick_start(t):
        if t <= BLAST:
            tags = []
            if t < BLAST: tags = [('W', t)]
            else: tags = [('W', q) for q in range(t, 18)] + [('T', 0)]
            if t <= 8: tags.append(('X', t))
            a.wait(vm=tags)
            I('s_barrier')
        stamp()
        if t < 18:
            u = wmap[t][0]
            if u != cur_unit[0]:
                d = (u - cur_unit[0]) * U
                for b in range(4):
                    I(f'v_add_u32 v{vRA[b]}, {d & 0xffffffff}, v{vRA[b]}')
                cur_unit[0] = u
        if t <= 8:
            for c in range(4):
                k = 4 * t + c
                if c == 0: ad = vXR
                else:
                    I(f'v_xor_b32 v{vTMP}, {32*c}, v{vXR}'); ad = vTMP
                I(f'ds_read_b128 a[{4*k}:{4*k+3}], v{ad} offset:{(t % 3)*32768 if (t % 3) < 2 else 0}', ('XR', t)) if (t % 3) < 2 else None
                if (t % 3) == 2:
                    I(f'v_add_u32 v{vTMP}, 65536, v{ad}')
                    I(f'ds_read_b128 a[{4*k}:{4*k+3}], v{vTMP}', ('XR', t))
            if t + 3 <= 8: pend_x[t] = True
        for q, (u, ft) in wmap.items():
            if ft == t: fill.extend(dma_w(q))
        for i in tfill.get(t, []): fill.extend(dma_t(i))

    rd = 0
    def advance_reads(upto):
        nonlocal rd
        while rd <= upto and rd < N:
            if rd == 0 or seq[rd]['tick'] != seq[rd-1]['tick']:
                tick_start(seq[rd]['tick'])
            issue_reads(rd); rd += 1
    advance_reads(PD - 1)
    for n in range(N):
        it = seq[n]
        if it['first']:
            while any(e[2] == it['tile'] for e in epi):
                _, t, _ = epi.pop(0); I(t, ('ST', 0))
        a.wait(lg=('F', n))
        T = ACC + 16 * it['tile']; buf = FR + 4 * (n % 8); k = it['k']
        C = '0' if it['first'] else f'v[{T}:{T+15}]'
        I(f'v_mfma_f32_32x32x16_bf16 v[{T}:{T+15}], v[{buf}:{buf+3}], a[{4*k}:{4*k+3}], {C}')
        advance_reads(n + PD)
        if it['last']:
            for t in epilogue(it['tile'], it['g']): epi.append((n + 3, t, it['tile']))
        for t in list(pend_x):
            if a.lg_is_done(('XR', t)):
                fill[0:0] = dma_x(t + 3); del pend_x[t]
        if fill:
            emit_groups([fill.pop(0)])
        budget = 44
        while epi and epi[0][0] <= n and budget > 0:
            _, t, _ = epi.pop(0); I(t, ('ST', 0)); budget -= cost(t)
    for _, t, _ in epi: I(t, ('ST', 0))
    assert not fill and not pend_x
    I(f's_cmp_lg_u32 s{sW}, 0')
    I(f's_cbranch_scc1 {name}_nors')
    I('s_cmp_ge_u32 s2, 72')
    I(f's_cbranch_scc1 {name}_nors')
    for i in range(4): I(f'v_mov_b32 v{16+i}, -1')
    I('s_lshl_b32 s63, s2, 10')
    I(f's_add_u32 s63, s63, {E_OFF}')
    I(f'buffer_store_dwordx4 v[16:19], v{vST}, s[20:23], s63 offen sc1')
    a.label(f'{name}_nors')
    stamp()
    if prof:
        I('s_waitcnt vmcnt(0) lgkmcnt(0)')
        stamp()
        I('s_waitcnt lgkmcnt(0)')
        for i, r in enumerate(stamps):
            if i >= len(stamps) - 4: I(f'v_writelane_b32 v15, s{r}, {i}')
        I(f's_lshl_b32 s63, s2, 3\ns_add_u32 s63, s63, s{sW}\ns_lshl_b32 s63, s63, 7\ns_add_u32 s63, s63, {PROF_OFF}')
        I('v_lshlrev_b32 v14, 2, v0')
        I('v_cmp_gt_u32 vcc, 32, v0\ns_and_saveexec_b64 s[4:5], vcc')
        I('buffer_store_dword v15, v14, s[20:23], s63 offen')
    a.label(f'{name}_done')
    I('s_endpgm')
    launch = f'; @launch kernel={name} grid=(256,1,1) block=(512,1,1) lds=163840'
    return launch, a.text(), kd(name, 256, 112), a
```

```python
from asmlib import *
from layout import *
from k2a import gen_k2a
from k2b import gen_k2b
def gen_k2(name, prof=False):
    a = Asm(); I = a.I
    a.raw(f'.p2align 8\n.globl {name}\n.type {name},@function\n{name}:')
    I('s_cmp_ge_u32 s2, 256')
    I(f's_cbranch_scc1 {name}_done')
    I('v_lshrrev_b32 v14, 6, v0')
    I('v_and_b32 v0, 63, v0')
    I('v_readfirstlane_b32 s24, v14')
    I('s_cmp_ge_u32 s2, 64')
    I(f's_cbranch_scc1 {name}_ffn')
    gen_k2b(a, name, prof)
    a.vm = []; a.vm_done = 0; a.lg = []; a.lg_done = 0
    gen_k2a(a, name, prof)
    a.label(f'{name}_done')
    I('s_endpgm')
    launch = f'; @launch kernel={name} grid=(256,1,1) block=(512,1,1) lds=163840'
    return launch, a.text(), kd(name, 256, 256), a
```

```python
from asmlib import *
from layout import *
from prof import Prof

def gen_k2a(a, name, prof=False, store_aux='sc1'):
    I = a.I
    UN = 40960
    sW = 24
    a.label(f'{name}_ffn')
    a.hist = []
    I(f's_load_dwordx2 s[4:5], s[0:1], {A_WD}')
    I(f's_load_dwordx2 s[6:7], s[0:1], {A_WS}')
    I('s_sub_u32 s48, s2, 64')
    I('s_lshr_b32 s48, s48, 3')
    I('s_mul_i32 s49, s48, 43')
    I('s_lshr_b32 s49, s49, 7')
    I('s_mul_i32 s50, s49, 3')
    I('s_sub_u32 s50, s48, s50')
    I('s_and_b32 s51, s2, 1')
    I('s_lshl_b32 s51, s51, 3')
    I('s_add_u32 s51, s51, s49')
    I('s_bfe_u32 s52, s2, 0x20001')
    I(f's_cmp_ge_u32 s{sW}, 4')
    I(f's_cbranch_scc1 {name}_ffn_load')

    P = Prof(a, prof, 9)
    P.stamp()
    vRW = [1, 2]; vRH = 3; vST = 4
    FR = 16
    NS = 3
    ACC = 80
    I(f's_and_b32 s53, s{sW}, 1')
    I(f's_lshr_b32 s54, s{sW}, 1')
    I('v_lshrrev_b32 v10, 5, v0')
    I('v_bfe_u32 v11, v0, 2, 2')
    I('v_lshl_add_u32 v10, v10, 2, v11')
    I('v_lshlrev_b32 v10, 7, v10')
    I('v_bfe_u32 v11, v0, 3, 1')
    I('v_lshl_add_u32 v10, v11, 6, v10')
    I('v_bfe_u32 v11, v0, 4, 1')
    I('v_lshl_add_u32 v10, v11, 5, v10')
    I('v_and_b32 v11, 3, v0')
    I(f'v_lshl_add_u32 v{vRW[0]}, v11, 3, v10')
    I(f'v_xor_b32 v{vRW[1]}, 64, v{vRW[0]}')
    I(f's_lshl_b32 s55, s54, 6')
    I(f'v_xor_b32 v{vRW[0]}, s55, v{vRW[0]}')
    I(f'v_xor_b32 v{vRW[1]}, s55, v{vRW[1]}')
    I(f's_lshl_b32 s55, s54, 13')
    I(f'v_add_u32 v{vRW[0]}, s55, v{vRW[0]}')
    I(f's_lshl_b32 s55, s54, 14')
    I(f'v_add_u32 v{vRW[1]}, s55, v{vRW[1]}')
    I(f'v_lshlrev_b32 v{vST}, 4, v0')
    I(f's_lshl_b32 s55, s53, 13')
    I(f's_add_u32 s55, s55, 24576')
    I(f'v_add_u32 v{vRH}, s55, v{vST}')
    I('s_lshl_b32 s56, s52, 6')
    I('s_lshl_b32 s57, s51, 2')
    I('s_add_u32 s56, s56, s57')
    I('s_lshl_b32 s57, s53, 1')
    I('s_add_u32 s56, s56, s57')
    I('s_mul_i32 s56, s56, 18')
    I('s_mul_i32 s57, s50, 6')
    I('s_add_u32 s56, s56, s57')
    I('s_mul_i32 s57, s54, 3')
    I('s_add_u32 s56, s56, s57')
    I('s_lshl_b32 s56, s56, 12')
    I(f's_add_u32 s56, s56, {P_OFF}')
    I('s_waitcnt lgkmcnt(0)')
    srd(a, 20, 6, WS_USED)
    NCH = 72
    cur = [0]
    def reads(n):
        c = n % 4; base = FR + 20 * (n % NS)
        L = []
        L.append((f'ds_read_b128 v[{base}:{base+3}], v{vRH} offset:{c*1024}', ('A0', n)))
        for e in range(2):
            L.append((f'ds_read_b64_tr_b16 v[{base+8+2*e}:{base+9+2*e}], v{vRW[0]} offset:{(16*c + 8*e)*128}', ('B0', n)))
        L.append((f'ds_read_b128 v[{base+4}:{base+7}], v{vRH} offset:{4096 + c*1024}', ('A1', n)))
        for e in range(2):
            L.append((f'ds_read_b64_tr_b16 v[{base+12+2*e}:{base+13+2*e}], v{vRW[1]} offset:{(16*c + 8*e)*128}', ('B1', n)))
        for e in range(2):
            L.append((f'ds_read_b64_tr_b16 v[{base+16+2*e}:{base+17+2*e}], v{vRW[0]} offset:{8192 + (16*c + 8*e)*128}', ('B2', n)))
        return L
    def tick_start(t):
        L = [('s_barrier', None)]
        u = t % 4
        if u != cur[0]:
            d = ((u - cur[0]) * UN) & 0xffffffff
            for r in (vRW[0], vRW[1], vRH): L.append((f'v_add_u32 v{r}, {d}, v{r}', None))
            cur[0] = u
        L.append(('STAMP', None))
        return L
    rq = []
    def queue_chunk(n):
        if n >= NCH: return
        if n % 4 == 0: rq.extend(tick_start(n // 4))
        rq.extend(reads(n))
    def pop(k):
        while rq and k > 0:
            t, tag = rq.pop(0)
            if t == 'STAMP': P.stamp(); continue
            I(t, tag)
            if t.startswith('ds_'): k -= 1
    queue_chunk(0); queue_chunk(1); pop(99)
    for n in range(NCH):
        base = FR + 20 * (n % NS)
        queue_chunk(n + 2)
        order = [(0, 0), (1, 0), (0, 1), (1, 1), (0, 2), (1, 2)]
        pops = [2, 1, 2, 1, 1, 1]
        for m, (j, i) in enumerate(order):
            a.wait(lg=[(f'A{j}', n), (f'B{i}', n)])
            T = ACC + 16 * (3 * j + i)
            C = '0' if n == 0 else f'v[{T}:{T+15}]'
            I(f'v_mfma_f32_32x32x16_bf16 v[{T}:{T+15}], v[{base+4*j}:{base+4*j+3}], v[{base+8+4*i}:{base+11+4*i}], {C}')
            pop(pops[m])
        assert not rq
    P.stamp()
    for j in range(2):
        for i in range(3):
            T = ACC + 16 * (3 * j + i)
            I(f's_add_u32 s57, s56, {(j*18 + i)*4096}')
            for q in range(4):
                I(f'buffer_store_dwordx4 v[{T+4*q}:{T+4*q+3}], v{vST}, s[20:23], s57 offen offset:{q*1024} {store_aux}')
    P.stamp()
    P.dump(1, sW, 20, 0, 10, 57)
    I('s_endpgm')

    a.label(f'{name}_ffn_load')
    a.hist = []; a.vm = []; a.vm_done = 0; a.lg = []; a.lg_done = 0
    P = Prof(a, prof, 9)
    P.stamp()
    I(f's_sub_u32 s53, s{sW}, 4')
    I('v_lshrrev_b32 v10, 3, v0')
    I('v_mul_u32_u24 v10, 1152, v10')
    I('v_and_b32 v11, 7, v0')
    I('v_lshlrev_b32 v11, 4, v11')
    I('v_bfe_u32 v12, v0, 4, 1')
    I('v_lshlrev_b32 v12, 6, v12')
    I('v_xor_b32 v11, v11, v12')
    I('v_add_u32 v1, v10, v11')
    I('v_lshlrev_b32 v2, 4, v0')
    I('s_mul_i32 s54, s52, 1152')
    I('s_lshl_b32 s55, s53, 4')
    I('s_add_u32 s54, s54, s55')
    I('s_mul_i32 s54, s54, 1152')
    I('s_mul_i32 s55, s50, 384')
    I('s_add_u32 s54, s54, s55')
    I('s_lshl_b32 s55, s51, 2')
    I('s_add_u32 s55, s55, s53')
    I('s_mul_i32 s55, s55, 288')
    I('s_mul_i32 s56, s52, 72')
    I('s_add_u32 s55, s55, s56')
    I('s_lshl_b32 s55, s55, 10')
    I('s_lshl_b32 s56, s53, 11')
    I('s_lshl_b32 s57, s53, 12')
    I('s_add_u32 s57, s57, 24576')
    I('s_waitcnt lgkmcnt(0)')
    srd(a, 8, 4, 4608 * 1152)
    srd(a, 20, 6, WS_USED)
    def fill(s):
        u = (s % 4) * UN
        I(f's_add_u32 m0, s57, {u}')
        I(f's_add_u32 s58, s55, {H_OFF + s*4096}')
        for c in range(4):
            I(f'buffer_load_dwordx4 v2, s[20:23], s58 offen offset:{c*1024} lds', ('S', s))
        for l3 in range(3):
            for o in range(2):
                I(f's_add_u32 m0, s56, {u + l3*8192 + o*1024}')
                I(f's_add_u32 s58, s54, {(64*s + 8*o)*1152 + 128*l3}')
                I(f'buffer_load_dwordx4 v1, s[8:11], s58 offen lds', ('S', s))
    fill(0); fill(1)
    P.stamp()
    for t in range(18):
        a.wait(vm=('S', t))
        I('s_barrier')
        P.stamp()
        if t + 2 < 18: fill(t + 2)
    P.dump(1, sW, 20, 0, 10, 57)
    I('s_endpgm')
```

```python
from asmlib import *
from layout import *
from prof import Prof

def cmul_pk(I, d, x, l, add=None):
    if add is None:
        I(f'v_pk_mul_f32 v[{d}:{d+1}], v[{x}:{x+1}], v[{l}:{l+1}] op_sel:[0,0] op_sel_hi:[1,0]')
    else:
        I(f'v_pk_fma_f32 v[{d}:{d+1}], v[{x}:{x+1}], v[{l}:{l+1}], v[{add}:{add+1}] op_sel:[0,0,0] op_sel_hi:[1,0,1]')
    return f'v_pk_fma_f32 v[{d}:{d+1}], v[{x}:{x+1}], v[{l}:{l+1}], v[{d}:{d+1}] op_sel:[1,1,0] op_sel_hi:[0,1,1] neg_lo:[0,1,0]'

def gen_k2b(a, name, prof=False, store_aux='sc1'):
    I = a.I
    UN = 53248
    PB = 3 * UN
    CAR = 18432
    sW = 24
    I(f's_load_dwordx2 s[4:5], s[0:1], {A_X}')
    I(f's_load_dwordx2 s[6:7], s[0:1], {A_WS}')
    I('s_bfe_u32 s48, s2, 0x20001')
    I('s_and_b32 s49, s2, 1')
    I('s_lshl_b32 s49, s49, 3')
    I('s_lshr_b32 s50, s2, 3')
    I('s_add_u32 s49, s49, s50')
    I(f's_cmp_ge_u32 s{sW}, 4')
    I(f's_cbranch_scc1 {name}_ssm_load')

    P = Prof(a, prof, 9)
    P.stamp()
    vRB = [1, 2, 3, 4]; vRX = [5, 6, 7, 8]
    XF = 16; FR = 48; ACC = 80
    I('v_lshrrev_b32 v10, 5, v0')
    I('v_and_b32 v11, 31, v0')
    I('v_bfe_u32 v12, v0, 1, 3')
    I('v_xor_b32 v12, v12, v10')
    I('v_lshlrev_b32 v12, 4, v12')
    I(f'v_lshl_add_u32 v{vRB[0]}, v11, 7, v12')
    for c in range(1, 4): I(f'v_xor_b32 v{vRB[c]}, {32*c}, v{vRB[0]}')
    I(f's_lshl_b32 s51, s{sW}, 12')
    for c in range(4): I(f'v_add_u32 v{vRX[c]}, s51, v{vRB[c]}')
    I('s_waitcnt lgkmcnt(0)')
    srd(a, 20, 6, WS_USED)
    N = 9 * 36; PD = 6
    cur = [0]
    def issue(n):
        if n >= N: return
        t, m = divmod(n, 36); ct, c = divmod(m, 4)
        if m == 0:
            I('s_barrier')
            u = t % 3
            if u != cur[0]:
                d = ((u - cur[0]) * UN) & 0xffffffff
                for r in vRB + vRX: I(f'v_add_u32 v{r}, {d}, v{r}')
                cur[0] = u
            P.stamp()
            for cc in range(4):
                r = XF + 16 * (t % 2) + 4 * cc
                I(f'ds_read_b128 v[{r}:{r+3}], v{vRX[cc]}', ('X', t))
        buf = FR + 4 * (n % 8)
        I(f'ds_read_b128 v[{buf}:{buf+3}], v{vRB[c]} offset:{16384 + ct*4096}', ('F', n))
    for n in range(PD): issue(n)
    for n in range(N):
        t, m = divmod(n, 36); ct, c = divmod(m, 4)
        a.wait(lg=('F', n))
        T = ACC + 16 * ct; buf = FR + 4 * (n % 8); xr = XF + 16 * (t % 2) + 4 * c
        C = '0' if (t == 0 and c == 0) else f'v[{T}:{T+15}]'
        I(f'v_mfma_f32_32x32x16_bf16 v[{T}:{T+15}], v[{xr}:{xr+3}], v[{buf}:{buf+3}], {C}')
        issue(n + PD)
    P.stamp()
    PR = 16
    I('v_and_b32 v10, 15, v0')
    I('v_lshrrev_b32 v11, 4, v0')
    I(f'v_lshlrev_b32 v12, 4, v10')
    I(f'v_add_u32 v12, {PB}, v12')
    I(f's_mul_i32 s51, s{sW}, 4608')
    I('v_mul_u32_u24 v13, 1152, v11')
    I('v_lshl_add_u32 v13, v10, 3, v13')
    I('v_add_u32 v13, s51, v13')
    I('v_lshlrev_b32 v14, 6, v10')
    I('v_lshl_add_u32 v14, v11, 4, v14')
    I('s_nop 7')
    for ct in range(9):
        r = PR + 4 * ct
        I(f'ds_read_b128 v[{r}:{r+3}], v12 offset:{ct*256}', 'PR')
    for ct in range(9):
        T = ACC + 16 * ct
        for m in range(8):
            I(f'v_permlane16_swap_b32 v{T+2*m}, v{T+2*m+1}')
    a.wait(lg='PR')
    E0 = 52; E1 = 224
    src = [ACC + 16 * ct for ct in range(9)]
    for m in range(1, 8):
        dst = [(E0 if m % 2 else E1) + 2 * ct for ct in range(9)]
        second = []
        for ct in range(9):
            second.append(cmul_pk(I, dst[ct], src[ct], PR + 4 * ct, ACC + 16 * ct + 2 * m))
        for s in second: I(s)
        src = dst
    for ct in range(9):
        I(f'ds_write_b64 v13, v[{src[ct]}:{src[ct]+1}] offset:{ct*128}', 'EW')
    a.wait(lg='EW')
    I('s_barrier')
    P.stamp()
    for ct in range(9):
        second = []
        for m in range(8):
            u = ACC + 16 * ct + 2 * m
            second.append(cmul_pk(I, E1 + 2 * m, u, PR + 4 * ct + 2))
        for s in second: I(s)
        for m in range(8):
            u = ACC + 16 * ct + 2 * m
            I(f'v_pk_mov_b32 v[{u}:{u+1}], v[{E1+2*m}:{E1+2*m+1}], v[{E1+2*m}:{E1+2*m+1}] op_sel:[0,1]')
    I('s_lshl_b32 s52, s49, 2')
    I(f's_add_u32 s52, s52, s{sW}')
    I('s_mul_i32 s52, s52, 72')
    I('s_mul_i32 s53, s48, 9')
    I('s_add_u32 s52, s52, s53')
    I('s_lshl_b32 s52, s52, 10')
    I(f's_add_u32 s52, s52, {HT_OFF}')
    I('s_barrier')
    P.stamp()
    for ct in range(9):
        I(f'ds_read_b64 v[{E0+2*ct}:{E0+2*ct+1}], v13 offset:{CAR + ct*128}', 'CR')
    a.wait(lg='CR')
    src = [E0 + 2 * ct for ct in range(9)]
    for m in range(8):
        second = []
        for ct in range(9):
            u = ACC + 16 * ct + 2 * m
            second.append(cmul_pk(I, u, src[ct], PR + 4 * ct, u))
            src[ct] = u
        for s in second: I(s)
    for ct in range(9):
        T = ACC + 16 * ct
        o = E1 + 8 * (ct % 3)
        for i in range(4):
            I(f'v_cvt_pk_bf16_f32 v{o+i}, v{T+4*i}, v{T+4*i+2}')
        for i in range(4):
            I(f'v_cvt_pk_bf16_f32 v{o+4+i}, -v{T+4*i+1}, -v{T+4*i+3}')
        I(f's_add_u32 s53, s52, {ct*1024}')
        I(f's_add_u32 s54, s52, {(36+ct)*1024}')
        I(f'buffer_store_dwordx4 v[{o}:{o+3}], v14, s[20:23], s53 offen {store_aux}')
        I(f'buffer_store_dwordx4 v[{o+4}:{o+7}], v14, s[20:23], s54 offen {store_aux}')
    P.stamp()
    P.dump(1, sW, 20, 0, 10, 57)
    I('s_endpgm')

    a.label(f'{name}_ssm_load')
    a.hist = []; a.vm = []; a.vm_done = 0; a.lg = []; a.lg_done = 0
    P = Prof(a, prof, 9)
    P.stamp()
    I(f's_load_dwordx4 s[40:43], s[0:1], {A_LRE}')
    I(f's_load_dwordx4 s[44:47], s[0:1], {A_BRE}')
    I(f's_load_dwordx2 s[36:37], s[0:1], {A_LDT}')
    I(f's_load_dwordx2 s[38:39], s[0:1], {A_GW}')
    I(f's_sub_u32 s51, s{sW}, 4')
    I('v_lshrrev_b32 v10, 5, v0')
    I('v_lshlrev_b32 v10, 4, v10')
    I('v_bfe_u32 v11, v0, 4, 1')
    I('v_add_u32 v10, v10, v11')
    I('v_bfe_u32 v11, v0, 3, 1')
    I('v_lshl_add_u32 v10, v11, 3, v10')
    I('v_mul_u32_u24 v10, 1152, v10')
    I('v_and_b32 v11, 7, v0')
    I('v_lshrrev_b32 v12, 4, v0')
    I('v_xor_b32 v11, v11, v12')
    I('v_lshlrev_b32 v11, 4, v11')
    I('v_add_u32 v1, v10, v11')
    I('v_xor_b32 v2, 64, v1')
    I('v_lshrrev_b32 v10, 3, v0')
    I('v_mul_u32_u24 v10, 1152, v10')
    I('v_add_u32 v3, v10, v11')
    I('s_and_b32 s52, s51, 1')
    I('s_lshl_b32 s53, s52, 6')
    I('v_xor_b32 v3, s53, v3')
    I('s_lshl_b32 s53, s49, 2')
    I('s_add_u32 s53, s53, s51')
    I(f's_mul_i32 s53, s53, {32*1152}')
    I('s_mul_i32 s54, s48, 144')
    I('s_lshl_b32 s55, s52, 3')
    I('s_add_u32 s55, s55, s54')
    I('s_mul_i32 s55, s55, 1152')
    I('s_lshl_b32 s56, s51, 12')
    I('s_lshl_b32 s57, s51, 10')
    I('s_add_u32 s57, s57, 16384')
    I('s_lshl_b32 s58, s51, 6')
    I('v_add_u32 v4, s58, v0')
    I('v_min_u32 v4, 143, v4')
    I('v_add_u32 v5, s54, v4')
    I('v_lshlrev_b32 v6, 1, v5')
    I('s_cmp_eq_u32 s51, 3')
    I('s_cselect_b32 s59, 1, 0')
    I('s_cmp_lt_u32 s48, 2')
    I('s_cselect_b32 s59, s59, 0')
    I('s_waitcnt lgkmcnt(0)')
    srd(a, 8, 4, 2048 * 1152)
    srd(a, 20, 6, WS_USED)
    I('s_cmp_lt_u32 s51, 2')
    I('s_cselect_b32 s12, s44, s46')
    I('s_cselect_b32 s13, s45, s47')
    I('s_and_b32 s13, s13, 0xffff')
    I(f's_mov_b32 s14, {576*1152}')
    I('s_mov_b32 s15, 0x20000')
    srd(a, 16, 40, 1152)
    I('buffer_load_ushort v20, v6, s[16:19], 0 offen', 'PL')
    srd(a, 28, 42, 1152)
    I('buffer_load_ushort v21, v6, s[28:31], 0 offen', 'PL')
    srd(a, 32, 36, 1152)
    I('buffer_load_ushort v22, v6, s[32:35], 0 offen', 'PL')
    def fill_x(s):
        u = (s % 3) * UN
        for i in range(4):
            I(f's_add_u32 m0, s56, {u + i*1024}')
            I(f's_add_u32 s60, s53, {2*i*1152 + 128*s}')
            I(f'buffer_load_dwordx4 v{1 + (i & 1)}, s[8:11], s60 offen lds', ('S', s))
    def fill_b(s, cts):
        u = (s % 3) * UN
        for ct in cts:
            I(f's_add_u32 m0, s57, {u + ct*4096}')
            I(f's_add_u32 s60, s55, {16*ct*1152 + 128*s}')
            I(f'buffer_load_dwordx4 v3, s[12:15], s60 offen lds', ('S', s))
    fill_x(0); fill_b(0, range(9)); fill_x(1); fill_b(1, range(6))
    P.stamp()
    a.wait(vm='PL')
    LR, LI, T0, T1, T2 = 20, 21, 23, 24, 25
    LAM = 28
    L8 = 32; L128 = 34; TP = 36
    I('v_lshlrev_b32 v20, 16, v20')
    I('v_lshlrev_b32 v21, 16, v21')
    I('v_lshlrev_b32 v22, 16, v22')
    I('v_mul_f32 v22, 0x3fb8aa3b, v22')
    I('v_exp_f32 v22, v22')
    I('v_cvt_pk_bf16_f32 v22, v22, v22')
    I('v_lshlrev_b32 v22, 16, v22')
    I(f'v_mul_f32 v{T0}, v22, v{LR}')
    I(f'v_mul_f32 v{T1}, v22, v{LI}')
    I(f'v_mul_f32 v{T0}, 0x3fb8aa3b, v{T0}')
    I(f'v_exp_f32 v{T0}, v{T0}')
    I(f'v_mul_f32 v{T1}, 0.15915494, v{T1}')
    I(f'v_rndne_f32 v{T2}, v{T1}')
    I(f'v_sub_f32 v{T1}, v{T1}, v{T2}')
    I(f'v_cos_f32 v{LAM}, v{T1}')
    I(f'v_sin_f32 v{LAM+1}, v{T1}')
    I(f'v_mul_f32 v{LAM}, v{T0}, v{LAM}')
    I(f'v_mul_f32 v{LAM+1}, v{T0}, v{LAM+1}')
    I(f'v_add_f32 v{T0}, -1.0, v{LAM}')
    I(f'v_mul_f32 v{T1}, v{LR}, v{LR}')
    I(f'v_fmac_f32 v{T1}, v{LI}, v{LI}')
    I(f'v_rcp_f32 v{T1}, v{T1}')
    I(f'v_mul_f32 v{LAM+2}, v{T0}, v{LR}')
    I(f'v_fmac_f32 v{LAM+2}, v{LAM+1}, v{LI}')
    I(f'v_mul_f32 v{LAM+3}, v{LAM+1}, v{LR}')
    I(f'v_fma_f32 v{LAM+3}, -v{T0}, v{LI}, v{LAM+3}')
    I(f'v_add_f32 v{T1}, v{T1}, v{T1}')
    I(f'v_mul_f32 v{LAM+2}, v{LAM+2}, v{T1}')
    I(f'v_mul_f32 v{LAM+3}, v{LAM+3}, v{T1}')
    I('v_lshlrev_b32 v7, 4, v4')
    I(f'v_add_u32 v7, {PB}, v7')
    I(f'ds_write_b128 v7, v[{LAM}:{LAM+3}]', 'PW')
    def sq(d, s):
        I(cmul_pk(I, d, s, s))
    sq(L8, LAM); sq(TP, L8); sq(L8, TP)
    sq(TP, L8); sq(L128, TP); sq(TP, L128); sq(L128, TP)
    I('v_lshrrev_b32 v10, 5, v0')
    I('s_lshl_b32 s60, s48, 1')
    I('v_add_u32 v10, s60, v10')
    I('v_lshlrev_b32 v10, 12, v10')
    I('v_and_b32 v11, 31, v0')
    I('v_lshl_add_u32 v10, v11, 7, v10')
    I('v_bfe_u32 v11, v0, 1, 3')
    I('v_lshl_add_u32 v8, v11, 4, v10')
    I('v_mov_b32 v26, 0')
    I('v_mov_b32 v27, 0')
    a.wait(lg='PW')
    GX = 40
    for t in range(9):
        a.wait(vm=('S', t))
        I('s_barrier')
        P.stamp()
        I('s_cmp_eq_u32 s59, 0')
        I(f's_cbranch_scc1 {name}_g{t}a')
        I(f's_load_dwordx16 s[64:79], s[38:39], {128*t}')
        for p in range(8):
            I(f'v_xor_b32 v10, {16*p}, v8')
            I(f'v_add_u32 v10, {(t % 3)*UN}, v10')
            I(f'ds_read_b128 v[{GX+4*p}:{GX+4*p+3}], v10')
        a.label(f'{name}_g{t}a')
        if t + 1 < 9: fill_b(t + 1, range(6, 9))
        if t + 2 < 9:
            fill_x(t + 2); fill_b(t + 2, range(6))
        I('s_cmp_eq_u32 s59, 0')
        I(f's_cbranch_scc1 {name}_g{t}b')
        I('s_waitcnt lgkmcnt(0)')
        for i in range(16):
            I(f'v_dot2_f32_bf16 v{26 + (i & 1)}, v{GX+i}, s{64+i}, v{26 + (i & 1)}')
        I(f's_load_dwordx16 s[64:79], s[38:39], {128*t + 64}')
        I('s_waitcnt lgkmcnt(0)')
        for i in range(16):
            I(f'v_dot2_f32_bf16 v{26 + (i & 1)}, v{GX+16+i}, s{64+i}, v{26 + (i & 1)}')
        a.label(f'{name}_g{t}b')
    a.lg = []; a.lg_done = 0
    I('s_cmp_eq_u32 s59, 0')
    I(f's_cbranch_scc1 {name}_gdone')
    I('s_nop 3')
    I('v_add_f32 v26, v26, v27')
    I('v_cvt_pk_bf16_f32 v26, v26, v26')
    I('v_lshlrev_b32 v26, 16, v26')
    I('v_mul_f32 v26, 0xbfb8aa3b, v26')
    I('v_exp_f32 v26, v26')
    I('v_add_f32 v26, 1.0, v26')
    I('v_rcp_f32 v26, v26')
    I('v_cvt_pk_bf16_f32 v26, v26, v26')
    I('v_lshlrev_b32 v26, 16, v26')
    I('v_and_b32 v10, 32, v0')
    I('v_bfe_u32 v11, v0, 2, 1')
    I('v_lshl_add_u32 v10, v11, 4, v10')
    I('v_bfe_u32 v11, v0, 3, 2')
    I('v_lshl_add_u32 v10, v11, 1, v10')
    I('v_bfe_u32 v11, v0, 1, 1')
    I('v_add_u32 v10, v10, v11')
    I('v_and_b32 v11, 1, v0')
    I('v_lshl_add_u32 v10, v11, 3, v10')
    I('v_lshlrev_b32 v10, 2, v10')
    I('s_lshl_b32 s60, s49, 9')
    I('s_lshl_b32 s61, s48, 8')
    I('s_add_u32 s60, s60, s61')
    I(f's_add_u32 s60, s60, {G_OFF}')
    I('buffer_store_dword v26, v10, s[20:23], s60 offen')
    a.label(f'{name}_gdone')
    a.hist = []
    I(f's_add_u32 s28, s6, {E_OFF}')
    I('s_addc_u32 s29, s7, 0')
    I('s_and_b32 s29, s29, 0xffff')
    I(f's_mov_b32 s30, {E_SZ}')
    I('s_mov_b32 s31, 0x20000')
    I('v_lshlrev_b32 v7, 3, v4')
    I('v_lshlrev_b32 v6, 3, v5')
    PO = 72
    for i in range(15):
        I(f's_sub_u32 s60, s49, {i+1}')
        I('s_mul_i32 s60, s60, 4608')
        I(f's_cmp_gt_u32 s49, {i}')
        I('s_cselect_b32 s60, s60, 0x1000000')
        I(f'v_add_u32 v{PO+i}, s60, v6')
    I('s_mul_i32 s61, s49, 4608')
    I('s_barrier')
    P.stamp()
    I('s_cmp_eq_u32 s51, 3')
    I(f's_cbranch_scc1 {name}_x2')
    EV = 88
    PV = 120
    for r in range(16):
        I(f'ds_read_b64 v[{EV+2*r}:{EV+2*r+1}], v7 offset:{r*1152}', 'ER')
    a.wait(lg='ER')
    S0, S1 = 36, 38
    src = EV
    for r in range(1, 16):
        d = S0 if r % 2 else S1
        I(cmul_pk(I, d, src, L8, EV + 2 * r))
        src = d
    for k in range(2):
        I(f'v_cmp_eq_u32 vcc, -1, v{src+k}')
        I(f'v_mov_b32 v10, 0x7fc00000')
        I(f'v_cndmask_b32 v{src+k}, v{src+k}, v10, vcc')
    I(f'buffer_store_dwordx2 v[{src}:{src+1}], v6, s[28:31], s61 offen sc1')
    I('s_mov_b32 s62, 0')
    a.label(f'{name}_poll')
    a.hist = []
    for i in range(15):
        I(f'buffer_load_dwordx2 v[{PV+2*i}:{PV+2*i+1}], v{PO+i}, s[28:31], 0 offen sc1')
    I('s_waitcnt vmcnt(0)')
    I(f'v_max_u32 v10, v{PV}, v{PV+1}')
    for i in range(1, 15):
        I(f'v_max3_u32 v10, v{PV+2*i}, v{PV+2*i+1}, v10')
    I('v_cmp_eq_u32 vcc, -1, v10')
    I('s_nop 4')
    I(f's_cbranch_vccz {name}_ready')
    I('s_sleep 2')
    I('s_add_u32 s62, s62, 1')
    I('s_cmp_lt_u32 s62, 0x40000')
    I(f's_cbranch_scc1 {name}_poll')
    a.label(f'{name}_ready')
    a.hist = []
    P.stamp()
    src = PV + 28
    for i in range(13, -1, -1):
        d = S0 if i % 2 else S1
        I(cmul_pk(I, d, src, L128, PV + 2 * i))
        src = d
    for r in range(16):
        c = PV + 2 * (r % 8)
        I(cmul_pk(I, c, src, LAM + 2))
        I(f'ds_write_b64 v7, v[{c}:{c+1}] offset:{CAR + r*1152}', 'CW')
        if r < 15:
            d = S0 if src == S1 else S1
            I(cmul_pk(I, d, src, L8, EV + 2 * r))
            src = d
    I('s_waitcnt lgkmcnt(0)')
    a.label(f'{name}_x2')
    a.hist = []
    I('s_barrier')
    P.stamp()
    P.dump(1, sW, 20, 0, 10, 57)
    I('s_endpgm')
```

```python
from asmlib import *
from layout import *
from prof import Prof

def gen_k3(name, prof=False):
    a = Asm(); I = a.I
    UN = 40960
    sW = 24
    a.raw(f'.p2align 8\n.globl {name}\n.type {name},@function\n{name}:')
    I('s_cmp_ge_u32 s2, 192')
    I(f's_cbranch_scc1 {name}_done')
    I(f's_load_dwordx2 s[6:7], s[0:1], {A_WS}')
    I(f's_load_dwordx4 s[44:47], s[0:1], {A_CRE}')
    I(f's_load_dwordx2 s[4:5], s[0:1], {A_X}')
    I(f's_load_dwordx2 s[40:41], s[0:1], {A_DSK}')
    I(f's_load_dwordx2 s[42:43], s[0:1], {A_OUT}')
    I('v_lshrrev_b32 v14, 6, v0')
    I('v_and_b32 v0, 63, v0')
    I(f'v_readfirstlane_b32 s{sW}, v14')
    I('s_and_b32 s48, s2, 7')
    I('s_lshl_b32 s48, s48, 2')
    I('s_bfe_u32 s49, s2, 0x20003')
    I('s_add_u32 s48, s48, s49')
    I('s_lshr_b32 s49, s2, 5')
    I(f's_cmp_ge_u32 s{sW}, 6')
    I(f's_cbranch_scc1 {name}_load')

    P = Prof(a, prof, 9)
    P.stamp()
    vRA, vRB, vL16, vXO, vOO, vGO = 1, 2, 3, 4, 5, 6
    vRBc = [2, 7, 8, 12]
    FR = 16
    NS = 4
    ACC = 48
    PT = 64
    XV = 128
    GV = 144
    DS = 160
    I(f's_and_b32 s50, s{sW}, 1')
    I(f's_lshr_b32 s51, s{sW}, 1')
    I('s_lshl_b32 s52, s48, 1')
    I('s_add_u32 s52, s52, s50')
    I('s_mul_i32 s53, s49, 3')
    I('s_add_u32 s53, s53, s51')
    I(f'v_lshlrev_b32 v{vL16}, 4, v0')
    I('v_lshrrev_b32 v10, 5, v0')
    I('v_and_b32 v11, 31, v0')
    I('v_bfe_u32 v13, v0, 2, 2')
    I('v_lshl_add_u32 v13, v10, 3, v13')
    I('v_lshlrev_b32 v13, 6, v13')
    I('v_bfe_u32 v14, v0, 4, 1')
    I('v_lshl_add_u32 v13, v14, 5, v13')
    I('v_and_b32 v14, 3, v0')
    I('v_lshl_add_u32 v13, v14, 3, v13')
    I('s_lshl_b32 s54, s50, 12')
    I(f'v_add_u32 v{vRA}, s54, v13')
    I('v_bfe_u32 v13, v0, 1, 3')
    I('v_xor_b32 v13, v13, v10')
    I('v_lshlrev_b32 v13, 4, v13')
    I('v_lshl_add_u32 v13, v11, 7, v13')
    I('s_lshl_b32 s54, s51, 12')
    I('s_add_u32 s54, s54, 16384')
    I(f'v_add_u32 v{vRB}, s54, v13')
    for c in range(1, 4): I(f'v_xor_b32 v{vRBc[c]}, {32*c}, v{vRB}')
    I('v_mul_u32_u24 v13, 4608, v10')
    I(f'v_lshl_add_u32 v{vXO}, v11, 1, v13')
    I(f'v_lshlrev_b32 v{vOO}, 1, v{vXO}')
    I(f'v_lshlrev_b32 v{vGO}, 4, v10')
    I('v_lshlrev_b32 v13, 1, v11')
    I('s_waitcnt lgkmcnt(0)')
    srd(a, 20, 6, WS_USED)
    srd(a, 8, 4, 2048 * 1152)
    srd(a, 12, 40, 1152)
    srd(a, 16, 42, 2048 * 2304)
    I('s_mul_i32 s54, s52, 18')
    I('s_add_u32 s54, s54, s53')
    I('s_lshl_b32 s54, s54, 12')
    for ks in range(4):
        I(f's_add_u32 s55, s54, {P_OFF + ks*64*18*4096}')
        for q in range(4):
            r = PT + 16 * ks + 4 * q
            I(f'buffer_load_dwordx4 v[{r}:{r+3}], v{vL16}, s[20:23], s55 offen offset:{q*1024}', 'PT')
    I('s_lshl_b32 s55, s52, 7')
    I(f's_add_u32 s55, s55, {G_OFF}')
    for j in range(4):
        I(f'buffer_load_dwordx4 v[{GV+4*j}:{GV+4*j+3}], v{vGO}, s[20:23], s55 offen offset:{32*j}', 'PT')
    I('s_lshl_b32 s55, s53, 6')
    I(f'buffer_load_ushort v{DS}, v13, s[12:15], s55 offen', 'PT')
    I(f's_mul_i32 s56, s52, {32*1152}')
    I('s_add_u32 s56, s56, s55')
    for j in range(4):
        I(f's_add_u32 s57, s56, {8*j*1152}')
        for r in range(4):
            I(f'buffer_load_ushort v{XV+4*j+r}, v{vXO}, s[8:11], s57 offen offset:{r*1152}', 'PT')
    I('s_lshl_b32 s56, s56, 1')
    P.stamp()
    NCH = 72
    cur = [0]
    def reads(n):
        t, m = divmod(n, 8); ri, c = divmod(m, 4); base = FR + 8 * (n % NS)
        L = []
        for e in range(2):
            L.append((f'ds_read_b64_tr_b16 v[{base+2*e}:{base+2*e+1}], v{vRA} offset:{ri*8192 + c*1024 + e*256}', ('F', n)))
        L.append((f'ds_read_b128 v[{base+4}:{base+7}], v{vRBc[c]} offset:{ri*12288}', ('F', n)))
        return L
    def issue(n):
        if n >= NCH: return
        if n % 8 == 0:
            t = n // 8
            I('s_barrier')
            u = t % 4
            if u != cur[0]:
                d = ((u - cur[0]) * UN) & 0xffffffff
                for r in [vRA] + vRBc: I(f'v_add_u32 v{r}, {d}, v{r}')
                cur[0] = u
            P.stamp()
        for t, tag in reads(n): I(t, tag)
    for n in range(3): issue(n)
    for n in range(NCH):
        base = FR + 8 * (n % NS)
        a.wait(lg=('F', n))
        C = '0' if n == 0 else f'v[{ACC}:{ACC+15}]'
        I(f'v_mfma_f32_32x32x16_bf16 v[{ACC}:{ACC+15}], v[{base}:{base+3}], v[{base+4}:{base+7}], {C}')
        issue(n + 3)
    P.stamp()
    a.wait(vm='PT')
    def rnd(r0, r1, t):
        I(f'v_cvt_pk_bf16_f32 v{t}, v{r0}, v{r1}')
        I(f'v_lshlrev_b32 v{r0}, 16, v{t}')
        I(f'v_and_b32 v{r1}, 0xffff0000, v{t}')
    I(f'v_lshlrev_b32 v{DS}, 16, v{DS}')
    for v in range(16):
        I(f'v_add_f32 v{PT+v}, v{PT+v}, v{PT+16+v}')
        I(f'v_add_f32 v{PT+32+v}, v{PT+32+v}, v{PT+48+v}')
        I(f'v_lshlrev_b32 v{XV+v}, 16, v{XV+v}')
        I(f'v_add_f32 v{PT+v}, v{PT+v}, v{PT+32+v}')
        I(f'v_mul_f32 v{XV+v}, v{XV+v}, v{DS}')
        I(f'v_sub_f32 v{PT+16+v}, 1.0, v{GV+v}')
    for v in range(0, 16, 2):
        rnd(PT+v, PT+v+1, PT+32+v)
        rnd(XV+v, XV+v+1, PT+33+v)
        rnd(PT+16+v, PT+17+v, PT+48+v)
    for v in range(16):
        I(f'v_mul_f32 v{PT+v}, v{PT+v}, v{PT+16+v}')
        I(f'v_add_f32 v{ACC+v}, v{ACC+v}, v{XV+v}')
    for v in range(0, 16, 2):
        rnd(PT+v, PT+v+1, PT+32+v)
    for v in range(16):
        I(f'v_mul_f32 v{ACC+v}, v{GV+v}, v{ACC+v}')
        I(f'v_add_f32 v{ACC+v}, v{ACC+v}, v{PT+v}')
    for j in range(4):
        for r in range(4):
            if r % 2 == 0: I(f's_add_u32 s57, s56, {(8*j + r)*2304}')
            I(f'buffer_store_dword v{ACC+4*j+r}, v{vOO}, s[16:19], s57 offen offset:{(r % 2)*2304}')
    P.stamp()
    P.dump(2, sW, 20, 0, 10, 57)
    I('s_endpgm')

    a.label(f'{name}_load')
    a.hist = []; a.vm = []; a.vm_done = 0; a.lg = []; a.lg_done = 0
    P = Prof(a, prof, 9)
    P.stamp()
    I(f's_sub_u32 s50, s{sW}, 6')
    I('v_lshrrev_b32 v10, 3, v0')
    I('v_mul_u32_u24 v10, 1152, v10')
    I('v_and_b32 v11, 7, v0')
    I('v_lshrrev_b32 v12, 4, v0')
    I('v_xor_b32 v11, v11, v12')
    I('v_lshl_add_u32 v1, v11, 4, v10')
    I('v_xor_b32 v2, 64, v1')
    I('v_lshlrev_b32 v3, 4, v0')
    I('s_mul_i32 s51, s48, 144')
    I('s_mul_i32 s52, s50, 36')
    I('s_add_u32 s51, s51, s52')
    I('s_lshl_b32 s51, s51, 10')
    I(f's_add_u32 s51, s51, {HT_OFF}')
    I(f's_mul_i32 s52, s49, {96*1152}')
    I('s_lshl_b32 s53, s50, 13')
    I('s_mul_i32 s54, s50, 12288')
    I('s_add_u32 s54, s54, 16384')
    I('s_waitcnt lgkmcnt(0)')
    srd(a, 20, 6, WS_USED)
    I('s_cmp_eq_u32 s50, 0')
    I('s_cselect_b32 s8, s44, s46')
    I('s_cselect_b32 s9, s45, s47')
    I('s_and_b32 s9, s9, 0xffff')
    I(f's_mov_b32 s10, {576*1152}')
    I('s_mov_b32 s11, 0x20000')
    def fill(t):
        u = (t % 4) * UN
        for tbl in range(2):
            I(f's_add_u32 m0, s53, {u + tbl*4096}')
            I(f's_add_u32 s58, s51, {tbl*72*1024 + t*4096}')
            for c in range(4):
                I(f'buffer_load_dwordx4 v3, s[20:23], s58 offen offset:{c*1024} lds', ('S', t))
        for o in range(12):
            I(f's_add_u32 m0, s54, {u + o*1024}')
            I(f's_add_u32 s58, s52, {8*o*1152 + 128*t}')
            I(f'buffer_load_dwordx4 v{1 + (o & 1)}, s[8:11], s58 offen lds', ('S', t))
    fill(0); fill(1)
    P.stamp()
    for t in range(9):
        a.wait(vm=('S', t))
        I('s_barrier')
        P.stamp()
        if t + 2 < 9: fill(t + 2)
    P.dump(2, sW, 20, 0, 10, 57)
    a.label(f'{name}_done')
    I('s_endpgm')
    launch = f'; @launch kernel={name} grid=(192,1,1) block=(512,1,1) lds=163840'
    return launch, a.text(), kd(name, 168, 168), a
```

```python
H_OFF = 0
H_SZ = 64 * 288 * 1024
P_OFF = H_OFF + H_SZ
P_SZ = 4 * 64 * 18 * 4096
HT_OFF = P_OFF + P_SZ
HT_SZ = 64 * 72 * 1024
G_OFF = HT_OFF + HT_SZ
G_SZ = 8192
E_OFF = G_OFF + G_SZ
E_SZ = 16 * 576 * 8
PROF_OFF = E_OFF + E_SZ
PROF_SZ = 3 * 256 * 8 * 128
WS_USED = PROF_OFF + PROF_SZ
A_X, A_LRE, A_LIM, A_BRE, A_BIM, A_CRE, A_CIM, A_LDT, A_DSK, A_BX, A_WG, A_WU, A_WD, A_GW, A_OUT, A_DBG, A_WS = [8 * i for i in range(17)]
```

```python
from layout import *
class Prof:
    def __init__(self, a, on, vreg, base=92):
        self.a, self.on, self.v, self.base = a, on, vreg, base
        self.st = []
    def stamp(self):
        if not self.on: return
        n = len(self.st); r = self.base + 2 * (n % 4); self.st.append(r)
        if n >= 4: self.a.I(f'v_writelane_b32 v{self.v}, s{r}, {n-4}')
        self.a.I(f's_memtime s[{r}:{r+1}]')
    def dump(self, kidx, swave, srd, vlane, vtmp, stmp):
        if not self.on: return
        I = self.a.I
        I('s_waitcnt vmcnt(0) lgkmcnt(0)')
        self.stamp()
        I('s_waitcnt lgkmcnt(0)')
        for i, r in enumerate(self.st):
            if i >= len(self.st) - 4: I(f'v_writelane_b32 v{self.v}, s{r}, {i}')
        I(f's_lshl_b32 s{stmp}, s2, 3\ns_add_u32 s{stmp}, s{stmp}, s{swave}\ns_lshl_b32 s{stmp}, s{stmp}, 7\ns_add_u32 s{stmp}, s{stmp}, {PROF_OFF + kidx*256*8*128}')
        I(f'v_lshlrev_b32 v{vtmp}, 2, v{vlane}')
        I(f'v_cmp_gt_u32 vcc, 32, v{vlane}\ns_and_saveexec_b64 s[4:5], vcc')
        I(f'buffer_store_dword v{self.v}, v{vtmp}, s[{srd}:{srd+3}], s{stmp} offen')
        I('s_mov_b64 exec, s[4:5]')
```

```python
import sys
from k1 import gen_k1
from k2 import gen_k2
from k3 import gen_k3
HDR = open('gated_mix__ssm_conv_s5__swiglu_ffn__prompt.s.ref').read().split('; Override launch')[0]
def build(path, parts):
    s = HDR + '\n'.join(p[0] for p in parts) + '\n.amdgcn_target "amdgcn-amd-amdhsa--gfx950"\n.text\n'
    s += '\n'.join(p[1] for p in parts) + '\n.section .rodata,"a"\n' + '\n'.join(p[2] for p in parts) + '\n'
    open(path, 'w').write(s)
if __name__ == '__main__':
    for prof, path in ((True, 't1.s'), (False, 'gated_mix__ssm_conv_s5__swiglu_ffn__prompt.s')):
        ps = [gen_k1('k1_kernel', prof=prof), gen_k2('k2_kernel', prof=prof), gen_k3('k3_kernel', prof=prof)]
        build(path, ps)
        print([ (p[3].nops, len(p[3].lines)) for p in ps])
```

```python
from build import *
from asmlib import *
def empty(name):
    body = f'.p2align 8\n.globl {name}\n.type {name},@function\n{name}:\n    s_endpgm'
    return (f'; @launch kernel={name} grid=(256,1,1) block=(64,1,1) lds=0', body, kd(name, 8, 8, 16), None)
ps = [gen_k1('k1_kernel'), gen_k2('k2_kernel'), gen_k3('k3_kernel')]
e = empty('e_kernel')
def build2(path, parts, order):
    s = HDR + '\n'.join(parts[i][0] for i in order) + '\n.amdgcn_target "amdgcn-amd-amdhsa--gfx950"\n.text\n'
    s += '\n'.join(p[1] for p in parts) + '\n.section .rodata,"a"\n' + '\n'.join(p[2] for p in parts) + '\n'
    open(path, 'w').write(s)
build2('vA.s', ps, [0, 1, 2])
build2('vB.s', ps + [e], [0, 1, 2, 3])
build2('vC.s', ps + [e], [3, 0, 1, 2])
build2('vD.s', ps, [0, 1, 2, 0, 1, 2])
build2('vE.s', ps + [e], [0, 1, 2, 3, 3, 3, 3, 3])
build2('vF.s', ps, [0, 0, 1, 2])
```

```python
H_OFF = 0
H_SZ = 32 * 144 * 4096
HF_OFF = H_OFF + H_SZ
HF_SZ = 32 * 36 * 4096
AP_OFF = HF_OFF + HF_SZ
AP_SZ = 32 * 4 * 36 * 1024
PX_OFF = AP_OFF + AP_SZ
PX_SZ = 48 * 4 * 4 * 9216
G_OFF = PX_OFF + PX_SZ
G_SZ = 8192
E_OFF = G_OFF + G_SZ
E_SZ = 40 * 1024
FH_OFF = E_OFF + E_SZ
FH_SZ = 16 * 4 * 512
FS_OFF = FH_OFF + FH_SZ
FS_SZ = 32 * 256
FA_OFF = FS_OFF + FS_SZ
FA_SZ = 64 * 128
FP_OFF = FA_OFF + FA_SZ
FP_SZ = 48 * 16 * 32
NRS = (FP_OFF + FP_SZ - E_OFF) // 2048
PROF_OFF = FP_OFF + FP_SZ
PROF_SZ = 256 * 4 * 256
WS_USED = PROF_OFF + PROF_SZ
S_X, S_LRE, S_LIM, S_BRE, S_BIM, S_CRE, S_CIM, S_LDT = [56 + 2 * i for i in range(8)]
S_DSK, S_BX, S_WG, S_WU, S_WD, S_GW, S_OUT, S_DBG = [72 + 2 * i for i in range(8)]
S_WS = 88
sFQ, sTH, sIDX, sW, sJJ = 3, 4, 5, 6, 7
RX, RWG, RWU, RWS, RBM, RXS, RE0, RE1 = 8, 12, 16, 20, 24, 28, 32, 36
sKW = 40
sC = 90; sG64 = 91
OOB = 0x7ffffff0
SPIN = 0x8000
def R4(n): return f's[{n}:{n+3}]'
```

```python
from asmlib import *
from lay import *
from sched import *

XA, BI, XI, RING = 0, 65536, 102400, 98304
EA = 65536
FR, NF, XV, ACC = 40, 6, 64, 96
SET = lambda i: ACC + 32 * i
vPROF = 1
vWD, vRA0, vRA1, vST, vL0, vEL = 2, 3, 4, 5, 6, 7
LAMS, CFS, LAMX, CFX = 8, 10, 12, 14
TM = 16
XPK = 22
vXD = [30, 31, 32, 33]; vXR = [34, 35]; vBD, vXD2 = 36, 37; vBR = [38, 39]
vXIR = [20, 21]
vTD, vTR = 30, [31, 32]
SCR = SET(2)
S_L16, S_L256, S_L512Q, S_L16G, S_PG, X_L16, vEA, LD = SCR, SCR + 2, SCR + 4, SCR + 6, SCR + 8, SCR + 10, SCR + 12, SCR + 14
SQ, XQ, STMP = SCR + 24, SCR + 26, SCR + 28
sKX, sT0, sT1 = 49, 50, 51
RDB = 52
sM1K, sH, sNL = 74, 75, 56
sMX = 57
sHT, sHFS, sHFX, sFH, sFS, sFX, sG = 58, 59, 60, 61, 62, 63, 64
sMASK = 82
sCMP = 76

def xreg(s, kp, t):
    i = 32 * s + 16 * kp + 4 * t
    return f'a[{i}:{i+3}]' if s < 8 else f'v[{XV + i - 256}:{XV + i - 253}]'

def cmac(d, l, x):
    return [f'v_fmac_f32 v{d}, v{l}, v{x}', f'v_fmac_f32 v{d+1}, v{l}, v{x+1}',
            f'v_fma_f32 v{d}, -v{l+1}, v{x+1}, v{d}', f'v_fmac_f32 v{d+1}, v{l+1}, v{x}']
def cmul(d, l, x):
    return [f'v_mul_f32 v{d}, v{l}, v{x}', f'v_mul_f32 v{d+1}, v{l}, v{x+1}',
            f'v_fma_f32 v{d}, -v{l+1}, v{x+1}, v{d}', f'v_fmac_f32 v{d+1}, v{l+1}, v{x}']

def gen_entry(a, name, P, cfg):
    I = a.I
    I('s_cmp_ge_u32 s2, 256')
    I(f's_cbranch_scc1 {name}_done')
    I('s_load_dwordx16 s[56:71], s[0:1], 0')
    I('s_load_dwordx16 s[72:87], s[0:1], 64')
    I('s_load_dwordx2 s[88:89], s[0:1], 128')
    P.stamp('entry')
    I('v_lshrrev_b32 v2, 6, v0')
    I('v_and_b32 v0, 63, v0')
    I(f'v_readfirstlane_b32 s{sW}, v2')
    I(f's_and_b32 s{sTH}, s2, 1')
    I(f's_bfe_u32 s{sFQ}, s2, 0x20001')
    I(f's_lshr_b32 s{sIDX}, s2, 3')
    I(f's_lshr_b32 s{sJJ}, s2, 5')
    I(f's_and_b32 s{sT0}, s{sIDX}, 3')
    I(f's_lshl_b32 s{sC}, s{sTH}, 2')
    I(f's_add_u32 s{sC}, s{sC}, s{sT0}')
    I(f's_lshl_b32 s{sG64}, s{sC}, 2')
    I(f's_add_u32 s{sG64}, s{sG64}, s{sW}')
    rot = cfg.get('rot', 1)
    if rot == 1:
        I(f's_lshl_b32 s{sKX}, s{sT0}, 1')
        I(f's_add_u32 s{sKX}, s{sKX}, s{sJJ}')
        I(f's_add_u32 s{sKX}, s{sKX}, s{sTH}')
        I(f's_sub_u32 s{sT0}, s{sKX}, 9')
        I(f's_cmp_ge_u32 s{sKX}, 9')
        I(f's_cselect_b32 s{sKX}, s{sT0}, s{sKX}')
    elif rot == 2: I(f's_mov_b32 s{sKX}, s{sJJ}')
    else: I(f's_mov_b32 s{sKX}, 0')
    I(f's_mul_i32 s{sKW}, s{sKX}, {64*9216}')
    I(f's_lshl_b32 s{sKX}, s{sKX}, 7')
    I('v_lshrrev_b32 v10, 3, v0')
    I('v_and_b32 v11, 7, v0')
    I('v_lshrrev_b32 v12, 4, v0')
    I('v_xor_b32 v11, v11, v12')
    I('v_lshlrev_b32 v11, 4, v11')
    I('v_lshrrev_b32 v13, 5, v0')
    I('v_and_b32 v14, 3, v10')
    I('v_lshl_add_u32 v13, v13, 4, v14')
    I(f's_lshl_b32 s{sT0}, s{sG64}, 6')
    I(f'v_add_u32 v13, s{sT0}, v13')
    I('v_mul_u32_u24 v13, 1152, v13')
    I(f'v_add_u32 v{vXD[0]}, v13, v11')
    I(f'v_xor_b32 v13, 64, v{vXD[0]}')
    I(f'v_add_u32 v{vXD[1]}, {32*1152 - 1024}, v13')
    I(f'v_add_u32 v{vXD[2]}, {4608 - 2048}, v{vXD[0]}')
    I(f'v_add_u32 v{vXD[3]}, {32*1152 + 4608 - 3072}, v13')
    I(f's_and_b32 s{sT0}, s{sW}, 1')
    I(f's_lshl_b32 s{sT1}, s{sT0}, 6')
    I(f'v_xor_b32 v11, s{sT1}, v11')
    I(f's_mul_i32 s{sT1}, s{sFQ}, 18')
    I(f's_add_u32 s{sT1}, s{sT1}, s{sT0}')
    I(f's_lshl_b32 s{sT0}, s{sJJ}, 1')
    I(f's_add_u32 s{sT1}, s{sT1}, s{sT0}')
    I(f's_lshl_b32 s{sT1}, s{sT1}, 3')
    I(f'v_add_u32 v13, s{sT1}, v10')
    I('v_mul_u32_u24 v13, 1152, v13')
    I(f'v_add_u32 v{vBD}, v13, v11')
    I('v_and_b32 v15, 15, v0')
    I('s_waitcnt lgkmcnt(0)')
    srd(a, RX, S_X, 2048 * 1152)
    I(f's_cmp_lt_u32 s{sW}, 2')
    I(f's_cselect_b32 s{RBM}, s{S_BRE}, s{S_BIM}')
    I(f's_cselect_b32 s{RBM+1}, s{S_BRE+1}, s{S_BIM+1}')
    I(f's_and_b32 s{RBM+1}, s{RBM+1}, 0xffff')
    I(f's_mov_b32 s{RBM+2}, {576*1152}')
    I(f's_mov_b32 s{RBM+3}, 0x20000')
    I(f's_lshl_b32 s{sMX}, s{sW}, 14')
    I(f's_lshl_b32 s{sM1K}, s{sW}, 10')
    I(f's_cmp_ge_u32 s{sJJ}, 6')
    I(f's_cbranch_scc1 {name}_B')

def params(I, raw, lam, cf, pw, t):
    LR, LI, DT = raw
    A, PH, T2, T3 = t
    I(f'v_lshlrev_b32 v{LR}, 16, v{LR}')
    I(f'v_lshlrev_b32 v{LI}, 16, v{LI}')
    I(f'v_lshlrev_b32 v{DT}, 16, v{DT}')
    I(f'v_mul_f32 v{DT}, 0x3fb8aa3b, v{DT}')
    I(f'v_exp_f32 v{DT}, v{DT}')
    I(f'v_cvt_pk_bf16_f32 v{DT}, v{DT}, v{DT}')
    I(f'v_lshlrev_b32 v{DT}, 16, v{DT}')
    I(f'v_mul_f32 v{A}, v{DT}, v{LR}')
    I(f'v_mul_f32 v{PH}, v{DT}, v{LI}')
    I(f'v_mul_f32 v{A}, 0x3fb8aa3b, v{A}')
    I(f'v_mul_f32 v{PH}, 0.15915494, v{PH}')
    I(f'v_rndne_f32 v{T2}, v{PH}')
    I(f'v_sub_f32 v{PH}, v{PH}, v{T2}')
    for mul, d in [('1.0', lam)] + pw:
        I(f'v_mul_f32 v{T2}, {mul}, v{A}')
        I(f'v_mul_f32 v{T3}, {mul}, v{PH}')
        I(f'v_exp_f32 v{T2}, v{T2}')
        I(f'v_rndne_f32 v{d}, v{T3}')
        I(f'v_sub_f32 v{T3}, v{T3}, v{d}')
        I(f'v_cos_f32 v{d}, v{T3}')
        I(f'v_sin_f32 v{d+1}, v{T3}')
        I(f'v_mul_f32 v{d}, v{T2}, v{d}')
        I(f'v_mul_f32 v{d+1}, v{T2}, v{d+1}')
    I(f'v_add_f32 v{T2}, -1.0, v{lam}')
    I(f'v_mul_f32 v{T3}, v{LR}, v{LR}')
    I(f'v_fmac_f32 v{T3}, v{LI}, v{LI}')
    I(f'v_rcp_f32 v{T3}, v{T3}')
    I(f'v_mul_f32 v{cf}, v{T2}, v{LR}')
    I(f'v_fmac_f32 v{cf}, v{lam+1}, v{LI}')
    I(f'v_mul_f32 v{cf+1}, v{lam+1}, v{LR}')
    I(f'v_fma_f32 v{cf+1}, -v{T2}, v{LI}, v{cf+1}')
    I(f'v_add_f32 v{T3}, v{T3}, v{T3}')
    I(f'v_mul_f32 v{cf}, v{cf}, v{T3}')
    I(f'v_mul_f32 v{cf+1}, v{cf+1}, v{T3}')

class LdsPlan:
    def __init__(s, sch):
        s.sch = sch; s.al = []; s.last = {}; s.rel = set(); sch.on_barrier.append(s.bar)
    def alloc(s, key, addr, size):
        prev = [k for k, ad, sz in s.al if ad < addr + size and addr < ad + sz]
        s.al.append((key, addr, size))
        return lambda: all(k in s.rel for k in prev)
    def reader(s, key, tag): s.last[key] = tag
    def bar(s):
        a = s.sch.a
        for k, tag in s.last.items():
            if k not in s.rel and tag in a.lg and a.lg_is_done(tag) and not any(r['k'] == 'R' and r['tag'] == tag for r in s.sch.reads):
                s.rel.add(k)

def gen_phase1(a, name, B, P, cfg, tails, late=None):
    I = a.I
    nm = f'{name}_{"B" if B else "A"}'
    a.label(nm)
    a.hist = []; a.vm = []; a.vm_done = 0; a.lg = []; a.lg_done = 0
    RAWS = [SET(0), SET(0) + 1, SET(0) + 2]; RAWX = [SET(0) + 3, SET(0) + 4, SET(0) + 5]
    PT = [SET(0) + 8 + i for i in range(8)]
    def next_kx():
        return [f's_add_u32 s{sKX}, s{sKX}, 128', f's_cmp_lg_u32 s{sKX}, 1152\ns_cselect_b32 s{sKX}, s{sKX}, 0']
    def dma_x(s):
        L = [f's_add_u32 m0, s{sMX}, {XA + (s & 1)*8192}']
        L += [It(f'buffer_load_dwordx4 v{vXD[p]}, {R4(RX)}, s{sKX} offen offset:{1024*p} lds', ('X', s)) for p in range(4)]
        L += [f's_add_u32 m0, s{sMX}, {XA + (s & 1)*8192 + 4096}', f's_add_u32 s{sT1}, s{sKX}, 9216']
        L += [It(f'buffer_load_dwordx4 v{vXD[p]}, {R4(RX)}, s{sT1} offen offset:{1024*p} lds', ('X', s)) for p in range(4)]
        return L
    def dma_b(s):
        L = [f's_add_u32 m0, s{sM1K}, {BI + s*4096}', It(f'buffer_load_dwordx4 v{vBD}, {R4(RBM)}, s{sKX} offen lds', ('B', s))]
        if B: L += [f's_add_u32 m0, s{sM1K}, {XI + s*4096}', It(f'buffer_load_dwordx4 v{vXD2}, {R4(RXS)}, s{sKX} offen lds', ('B', s))]
        return L
    def emit(L):
        for t in L:
            if isinstance(t, str): I(t)
            else: I(t.txt, t.tag)
    emit(dma_x(0))
    if B:
        I(f's_mul_i32 s{sT0}, s{sFQ}, 18')
        I(f's_add_u32 s{sT0}, s{sT0}, s{sJJ}')
        I(f's_add_u32 s{sT0}, s{sT0}, 10')
        I(f's_lshl_b32 s{sT0}, s{sT0}, 3')
        I(f'v_add_u32 v13, s{sT0}, v10')
        I(f's_cmp_eq_u32 s{sW}, 1')
        I(f's_cselect_b32 s{sT1}, 0, 1152')
        I(f's_cselect_b32 s{RXS}, s{S_GW}, s{RBM}')
        I(f's_cselect_b32 s{RXS+1}, s{S_GW+1}, s{RBM+1}')
        I(f's_cselect_b32 s{RXS+2}, 1152, s{RBM+2}')
        I(f's_and_b32 s{RXS+1}, s{RXS+1}, 0xffff')
        I(f's_mov_b32 s{RXS+3}, 0x20000')
        I(f'v_mul_u32_u24 v13, s{sT1}, v13')
        I(f'v_add_u32 v{vXD2}, v13, v11')
        I('v_and_b32 v14, 7, v0')
        I(f'v_add_lshl_u32 v14, v14, s{sT0}, 1')
    emit(dma_b(0))
    I(f's_mul_i32 s{sT0}, s{sFQ}, 9')
    I(f's_add_u32 s{sT0}, s{sT0}, s{sJJ}')
    I(f's_lshl_b32 s{sT1}, s{sT0}, 4')
    I(f'v_add_lshl_u32 v13, v15, s{sT1}, 1')
    for i, sp in enumerate((S_LRE, S_LIM, S_LDT)):
        r = (RE0, RE1, RDB)[i]
        srd(a, r, sp, 1152)
        I(f'buffer_load_ushort v{RAWS[i]}, v13, {R4(r)}, 0 offen', 'PL')
        if B: I(f'buffer_load_ushort v{RAWX[i]}, v14, {R4(r)}, 0 offen', 'PL')
    I(f's_mul_i32 s{sHFS}, s{sG64}, 36')
    I(f's_add_u32 s{sHFS}, s{sHFS}, s{sT0}')
    I(f's_sub_u32 s{sHFX}, s{sHFS}, s{sJJ}')
    I(f's_add_u32 s{sHFX}, s{sHFX}, 8')
    I(f's_lshl_b32 s{sHFS}, s{sHFS}, 12')
    I(f's_lshl_b32 s{sHFX}, s{sHFX}, 12')
    I(f's_add_u32 s{sHFS}, s{sHFS}, {HF_OFF}')
    I(f's_add_u32 s{sHFX}, s{sHFX}, {HF_OFF}')
    emit(next_kx()); emit(dma_x(1)); emit(dma_b(1)); emit(next_kx())
    P.stamp('issued')
    srd(a, RWG, S_WG, 576 * 9216)
    srd(a, RWU, S_WU, 576 * 9216)
    srd(a, RWS, S_WS, WS_USED)
    srd(a, RDB, S_DBG, 256)
    for s in range(1, 9):
        I(f's_add_u32 s{sKW+s}, s{sKW+s-1}, {64*9216}')
        I(f's_cmp_lg_u32 s{sKW+s}, {576*9216}')
        I(f's_cselect_b32 s{sKW+s}, s{sKW+s}, 0')
    I(f's_lshl_b32 s{sT0}, s{sFQ}, 3')
    I(f's_add_u32 s{sT0}, s{sT0}, s{sJJ}')
    I(f's_lshl_b32 s{sFS}, s{sG64}, 6')
    I(f's_add_u32 s{sFS}, s{sFS}, s{sT0}')
    I(f's_lshl_b32 s{sFS}, s{sFS}, 2')
    I(f's_add_u32 s{sFS}, s{sFS}, {FS_OFF}')
    def esrd(r, sset):
        I(f's_lshl_b32 s{sset}, s{sset}, 10')
        I(f's_add_u32 s{sset}, s{sset}, {E_OFF}')
        I(f's_add_u32 s{r}, s{S_WS}, s{sset}')
        I(f's_addc_u32 s{r+1}, s{S_WS+1}, 0')
        I(f's_and_b32 s{r+1}, s{r+1}, 0xffff')
        I(f's_mov_b32 s{r+2}, 1024')
        I(f's_mov_b32 s{r+3}, 0x20000')
    esrd(RE0, sT0)
    if B:
        I(f's_lshl_b32 s{sT0}, s{sFQ}, 1')
        I(f's_add_u32 s{sT0}, s{sT0}, s{sJJ}')
        I(f's_add_u32 s{sT0}, s{sT0}, 26')
        I(f's_lshl_b32 s{sFX}, s{sG64}, 6')
        I(f's_add_u32 s{sFX}, s{sFX}, s{sT0}')
        I(f's_lshl_b32 s{sFX}, s{sFX}, 2')
        I(f's_add_u32 s{sFX}, s{sFX}, {FS_OFF}')
        esrd(RE1, sT0)
        I(f's_lshl_b32 s{sG}, s{sG64}, 8')
        I(f's_add_u32 s{sG}, s{sG}, {G_OFF}')
    I(f's_mul_i32 s{sT0}, s{sG64}, 144')
    I(f's_mul_i32 s{sT1}, s{sFQ}, 36')
    I(f's_add_u32 s{sT0}, s{sT0}, s{sT1}')
    I(f's_lshl_b32 s{sT0}, s{sT0}, 12')
    I(f's_lshl_b32 s{sH}, s{sJJ}, 14')
    I(f's_add_u32 s{sH}, s{sH}, s{sT0}')
    I(f's_lshl_b32 s{sHT}, s{sJJ}, 11')
    I(f's_add_u32 s{sHT}, s{sHT}, s{sT0}')
    I(f's_add_u32 s{sHT}, s{sHT}, {32*4096}')
    I(f's_lshr_b32 s{sFH}, s{sG64}, 1')
    I(f's_lshl_b32 s{sFH}, s{sFH}, 2')
    I(f's_add_u32 s{sFH}, s{sFH}, s{sFQ}')
    I(f's_lshl_b32 s{sFH}, s{sFH}, 5')
    I(f's_add_u32 s{sFH}, s{sFH}, s{sJJ}')
    I(f's_lshl_b32 s{sFH}, s{sFH}, 1')
    I(f's_and_b32 s{sT0}, s{sW}, 1')
    I(f's_add_u32 s{sFH}, s{sFH}, s{sT0}')
    I(f's_lshl_b32 s{sFH}, s{sFH}, 2')
    I(f's_add_u32 s{sFH}, s{sFH}, {FH_OFF}')
    I(f'v_mov_b32 v16, {OOB}')
    I(f'v_writelane_b32 v16, s{sFH}, 0')
    I(f's_add_u32 s{sT0}, s{sFH}, 64')
    I(f'v_writelane_b32 v16, s{sT0}, 1')
    I(f's_add_u32 s{sT0}, s{sFH}, 128')
    I(f'v_writelane_b32 v16, s{sT0}, 2')
    I(f'v_writelane_b32 v16, s{sFS}, 3')
    if B:
        I(f'v_writelane_b32 v16, s{sFX}, 4')
        cfg['fa_addr'](a, sT0, sT1)
        I(f'v_writelane_b32 v16, s{sT0}, 5')
    else:
        for sg in (1, 2, 3):
            cfg['fp_addr'](a, sg, sT0, sT1)
            I(f'v_writelane_b32 v16, s{sT0}, {3+sg}')
    I('v_mov_b32 v17, 0')
    I(f'buffer_store_dword v17, v16, {R4(RWS)}, 0 offen sc1', 'RS')
    I(f's_sub_u32 s{sT0}, 7, s{sC}')
    I(f's_lshl_b32 s{sT0}, s{sT0}, 7')
    I('v_lshlrev_b32 v16, 8, v12')
    I('v_lshl_add_u32 v16, v15, 3, v16')
    I(f'v_add_u32 v{vEL}, s{sT0}, v16')
    I(f's_cmp_eq_u32 s{sW}, 3')
    I(f's_cselect_b32 s{sMASK+1}, 0xffff0000, 0')
    I(f's_mov_b32 s{sMASK}, 0')
    def pub_addr(d):
        return [f'v_subrev_u32 v{d}, 768, v{vEL}', f'v_cndmask_b32 v{d}, v{vL0}, v{d}, s[{sMASK}:{sMASK+1}]']
    I('v_cmp_eq_u32 vcc, 0, v0')
    I(f'v_mov_b32 v16, {OOB}')
    I(f'v_cndmask_b32 v{vL0}, v16, v0, vcc')
    I(f'v_subrev_u32 v17, 768, v{vEL}')
    I(f'v_cndmask_b32 v{STMP+3}, v16, v17, s[{sMASK}:{sMASK+1}]')
    vEP = STMP + 3
    I('v_mov_b32 v18, -1')
    I('v_mov_b32 v19, -1')
    I(f'buffer_store_dwordx2 v[18:19], v{vEP}, {R4(RE0)}, 0 offen sc1', 'RS')
    if B: I(f'buffer_store_dwordx2 v[18:19], v{vEP}, {R4(RE1)}, 0 offen sc1', 'RS')
    I('v_lshrrev_b32 v16, 1, v15')
    I('v_xor_b32 v16, v16, v12')
    I('v_lshlrev_b32 v16, 4, v16')
    I('v_lshl_add_u32 v16, v15, 7, v16')
    I(f'v_add_u32 v{vXR[0]}, s{sMX}, v16')
    I(f'v_xor_b32 v{vXR[1]}, 64, v{vXR[0]}')
    I(f'v_add_u32 v{vBR[0]}, {BI}, v16')
    I(f'v_xor_b32 v{vBR[1]}, 64, v{vBR[0]}')
    if B:
        I(f'v_add_u32 v{vXIR[0]}, {XI}, v16')
        I(f'v_xor_b32 v{vXIR[1]}, 64, v{vXIR[0]}')
    I('v_lshrrev_b32 v16, 2, v0')
    I(f's_lshl_b32 s{sT0}, s{sW}, 4')
    I(f'v_add_u32 v16, s{sT0}, v16')
    I('v_mul_u32_u24 v16, 9216, v16')
    I('v_and_b32 v17, 3, v0')
    I('v_lshlrev_b32 v18, 4, v17')
    I('v_and_b32 v19, 32, v0')
    I('v_xor_b32 v18, v18, v19')
    I(f's_mul_i32 s{sT0}, s{sFQ}, 9')
    I(f's_add_u32 s{sT0}, s{sT0}, s{sJJ}')
    I(f's_lshl_b32 s{sT0}, s{sT0}, 8')
    I(f'v_add3_u32 v{vWD}, v16, v18, s{sT0}')
    I('v_bfe_u32 v16, v0, 2, 2')
    I('v_lshl_add_u32 v16, v12, 3, v16')
    I('v_lshlrev_b32 v16, 6, v16')
    I('v_lshl_add_u32 v16, v17, 3, v16')
    I('v_and_b32 v18, 1, v12')
    I('v_lshl_add_u32 v16, v18, 5, v16')
    I(f'v_add_u32 v{vRA0}, {RING}, v16')
    I(f'v_xor_b32 v{vRA1}, 32, v{vRA0}')
    I(f'v_lshlrev_b32 v{vST}, 4, v0')
    I(f's_lshl_b32 s{sT0}, s{sW}, 9')
    I(f's_add_u32 s{sT0}, s{sT0}, {EA}')
    I(f'v_lshl_add_u32 v{vEA}, v0, 3, s{sT0}')
    I(f's_mov_b32 s{sNL}, 0xbfb8aa3b')
    I('v_cvt_f32_u32 v16, v12')
    I(f'v_mul_f32 v{PT[4]}, 0x44000000, v16')
    I(f's_lshl_b32 s{sT0}, s{sW}, 2')
    I(f'v_add_lshl_u32 v16, v12, s{sT0}, 4')
    I(f'v_cvt_f32_u32 v{PT[5]}, v16')
    if B:
        I(f's_lshl_b32 s{sT0}, s{sFQ}, 3')
        I(f's_add_u32 s{sT0}, s{sT0}, s{sJJ}')
        I(f's_cmp_eq_u32 s{sT0}, 6')
        I(f's_cselect_b32 s{sT0}, 8, 99')
        I(f'v_cmp_eq_u32 vcc, s{sT0}, v15')
        I('v_lshlrev_b32 v16, 6, v12')
        I(f'v_mov_b32 v17, {OOB}')
        I(f'v_cndmask_b32 v{STMP+2}, v17, v16, vcc')
    a.wait(vm='PL')
    params(I, RAWS, LAMS, CFS, [('0x41800000', S_L16), ('0x43800000', S_L256), (f'v{PT[4]}', S_L512Q), (f'v{PT[5]}', S_L16G)], PT[:4])
    if B: params(I, RAWX, LAMX, CFX, [('0x41800000', X_L16), ('0x43800000', XPK), (f'v{PT[4]}', XPK + 2), (f'v{PT[5]}', XPK + 4)], PT[:4])
    P.stamp('setup')

    sch = Sched(a, P); lds = LdsPlan(sch)
    PD = cfg.get('PD', 4)
    U = []
    SS, SX = SET(4), SET(3)
    for s in range(9):
        for kp in range(2):
            for (base, ad) in [(SS, vBR)] + ([(SX, vXIR)] if B else []):
                for ri in range(2):
                    U.append(dict(stage=('B', s), rd=[lambda b, ad=ad, s=s, kp=kp, ri=ri: f'ds_read_b128 v[{b}:{b+3}], v{ad[kp]} offset:{s*4096 + ri*2048}'],
                                  acc=base + 16 * ri, s=s, kp=kp, swap=True, first=(s == 0 and kp == 0), last=(s == 8 and kp == 1), key=base))
    psets = ([(0, 1), (2, 4), (0, 1), (2, 4)] if B else [(0, 1), (2, 3), (0, 1), (2, 3)])
    tset = 3 if B else 4
    pos = lambda n: (n + 5) % 8
    def wunits(p, s, bb):
        n = 9 * p + s
        for kp in range(2):
            for m in range(2):
                off = pos(n) * 8192 + m * 4096 + kp * 2048
                U.append(dict(stage=('W', n), rd=[lambda b, e=e, off=off, bb=bb: f'ds_read_b64_tr_b16 v[{b+2*e}:{b+2*e+1}], v{(vRA0, vRA1)[bb]} offset:{off + e*256}' for e in range(2)],
                              acc=SET(psets[p][bb]) + 16 * m, s=s, kp=kp, swap=False, first=(s == 0 and kp == 0), last=(s == 8 and kp == 1), key=SET(psets[p][bb]), p=p, bb=bb, m=m))
    for p in range(4):
        h = cfg.get('headB', 4) if (B and p == 1) else 0
        tl = cfg.get('tail', 4) if p == 3 else 0
        for bb in range(2):
            for s in range(h): wunits(p, s, bb)
        for s in range(h, 9 - tl):
            for bb in range(2): wunits(p, s, bb)
        for bb in range(2):
            for s in range(9 - tl, 9): wunits(p, s, bb)
    TB = 81920
    taddr = lambda s: 4096 * s if s < 4 else RING - TB + 8192 + 4096 * (s - 4)
    for s in range(9):
        for kp in range(2):
            for m in range(2):
                off = taddr(s) + kp * 2048 + m * 1024
                U.append(dict(stage=('T', s), rd=[lambda b, e=e, off=off: f'ds_read_b64_tr_b16 v[{b+2*e}:{b+2*e+1}], v{vTR[e]} offset:{off}' for e in range(2)],
                              acc=SET(tset) + 16 * m, s=s, kp=kp, swap=False, first=(s == 0 and kp == 0), last=(s == 8 and kp == 1), key=SET(tset), p=4, bb=0, m=m))
    groups = [[('X', s), ('B', s)] for s in range(9)]
    wl = [[0], [1, 2]] + [[n, n + 1, n + 2] for n in range(3, 36, 3)]
    if B: wl = [[0], [1, 2], [3, 4, 5], [6, 7, 8], [9, 10, 11, 12], [13, 14], [15, 16], [17, 18, 19], [20, 21, 22], [23, 24, 25], [26, 27, 28], [29, 30, 31], [32, 33, 34, 35]]
    groups += [[('W', n) for n in g] for g in wl]
    groups += [[('T', s) for s in g] for g in ([0, 1, 2, 3], [4, 5, 6, 7, 8])]
    grp_of = {st: g for g in groups for st in g}
    published = set()
    first_mf = lambda u: 4 * u
    for u, un in enumerate(U):
        free = max(first_mf(u - PD), 4 * (u - NF) + 3)
        if un['stage'] not in published:
            g = grp_of[un['stage']]
            published.update(g)
            isx = g[0][0] == 'X'
            sch.reads.append(dict(k='B', vm=list(g), free=(4 * u - 1 if isx else free - 1), name=f'b{g[0][0]}{g[0][1]}', drain=(g[0] == ('W', 0)),
                                  iss=([('X', g[0][1] + 1), ('B', g[0][1] + 1)] if isx else [])))
            if g[0][0] == 'X':
                s = g[0][1]
                for kp in range(2):
                    for t in range(4):
                        sch.reads.append(dict(k='R', txt=f'ds_read_b128 {xreg(s, kp, t)}, v{vXR[kp]} offset:{(s & 1)*8192 + t*2048}', tag=('XR', s), free=-99, use=-99))
        buf = FR + 4 * (u % NF)
        for f in un['rd']:
            sch.reads.append(dict(k='R', txt=f(buf), tag=('F', u), free=free, use=4 * u))
        lds.reader(un['stage'], ('F', u))
    for s in range(9):
        lds.alloc(('B', s), BI + s * 4096, 4096)
        if B: lds.alloc(('B', s), XI + s * 4096, 4096)
    for s in range(9): lds.reader(('X', s), ('XR', s))
    lds.alloc(('X', 8), XA, 65536)
    def dma_w(n):
        c = lds.alloc(('W', n), RING + pos(n) * 8192, 8192)
        L = []
        if n and n % 9 == 0: L.append(f'v_add_u32 v{vWD}, 64, v{vWD}')
        for m in range(2):
            L += sch.grp([f's_add_u32 m0, s{sM1K}, {RING + pos(n)*8192 + m*4096}',
                          It(f'buffer_load_dwordx4 v{vWD}, {R4((RWG, RWU)[m])}, s{sKW + n % 9} offen lds', ('W', n))], cond=c, gapd=(cfg.get('wgap', 10) if n >= 3 else 0))
        return L
    D = []
    wafter = cfg.get('wafter', 8)
    for s in range(2, 9):
        c = (lambda s=s: ('XR', s - 2) in a.lg and a.lg_is_done(('XR', s - 2)) and not any(r['k'] == 'R' and r['tag'] == ('XR', s - 2) for r in sch.reads))
        D += sch.grp(dma_x(s) + dma_b(s), cond=c) + ([It(t, k='S') for t in next_kx()] if s < 8 else [])
        if s == wafter:
            for n in range(3): D += dma_w(n)
    tlo = [lds.alloc(('T', s), TB + taddr(s), 4096) for s in range(4)]
    for n in range(3, 36): D += dma_w(n)
    xdone = lambda: ('X', 8) in lds.rel
    Tset = [It(f's_bitcmp1_b32 s{sW}, 0\ns_cselect_b32 s{RXS}, s{RWU}, s{RWG}\ns_cselect_b32 s{RXS+1}, s{RWU+1}, s{RWG+1}', k='S', cond=xdone),
            f's_mov_b32 s{RXS+2}, {576*9216}', f's_mov_b32 s{RXS+3}, 0x20000',
            f'v_lshrrev_b32 v{vTD}, 1, v0', f'v_bfe_u32 v{vTR[0]}, v0, 4, 1', f'v_lshlrev_b32 v{vTR[0]}, 2, v{vTR[0]}', f'v_xor_b32 v{vTD}, v{vTD}, v{vTR[0]}',
            f's_lshr_b32 s{sKX}, s{sW}, 1', f's_lshl_b32 s{sKX}, s{sKX}, 5', f'v_add_u32 v{vTD}, s{sKX}, v{vTD}', f'v_mul_u32_u24 v{vTD}, 9216, v{vTD}',
            f'v_and_b32 v{vTR[0]}, 1, v0', f'v_lshl_add_u32 v{vTD}, v{vTR[0]}, 4, v{vTD}',
            f's_mul_i32 s{sKX}, s{sFQ}, 72', f's_add_u32 s{sKX}, s{sKX}, s{sJJ}', f's_add_u32 s{sKX}, s{sKX}, 64', f's_lshl_b32 s{sKX}, s{sKX}, 5',
            f'v_add_u32 v{vTD}, s{sKX}, v{vTD}',
            f'v_lshrrev_b32 v{vTR[1]}, 4, v0', f'v_lshlrev_b32 v{vTR[1]}, 8, v{vTR[1]}', f'v_and_b32 v{vTR[0]}, 31, v0', f'v_lshl_add_u32 v{vTR[0]}, v{vTR[0]}, 3, v{vTR[1]}',
            f'v_add_u32 v{vTR[0]}, {TB}, v{vTR[0]}', f'v_xor_b32 v{vTR[1]}, 128, v{vTR[0]}']
    tready = {}
    sch.add('tset', Tset + [FN(lambda: tready.update(ok=1))], prio=49, key=SCR)
    DT = []
    tstart = 4 * next(u for u, un in enumerate(U) if un['stage'] == ('W', 18))
    for s in range(9):
        c = tlo[s] if s < 4 else lds.alloc(('T', s), TB + taddr(s), 4096)
        DT += sch.grp([f's_add_u32 m0, s{sM1K}, {TB + taddr(s)}', It(f'buffer_load_dwordx4 v{vTD}, {R4(RXS)}, s{sKW + s} offen lds', ('T', s))],
                      cond=(lambda c=c: c() and tready), t0=tstart, gapd=cfg.get('tgap', 20))
    sch.add('dma', D, prio=10)
    sch.add('dmaT', DT, prio=11)

    st = {}
    def chk_rs():
        if a.need_vm('RS') is None: st['rs'] = 1
    sch.on_barrier.append(chk_rs)
    nstart = 4 * sum(1 for un in U if un['stage'][0] == 'B')
    def slow(label, loads, test, cmpreg):
        L = [f'{label}_s:', f's_mov_b32 s{sT0}, 0', f'{label}_l:', 's_sleep 1'] + loads + ['s_waitcnt vmcnt(0)'] + test + \
            ['s_nop 1', f's_cmp_eq_u64 s[{cmpreg}:{cmpreg+1}], 0', f's_cbranch_scc1 {label}', f's_add_u32 s{sT0}, s{sT0}, 1', f's_cmp_lt_u32 s{sT0}, {SPIN}',
             f's_cbranch_scc1 {label}_l', f's_branch {label}']
        tails.append('\n'.join(x if x.endswith(':') else '    ' + x for x in L))
        return BR(f's_cmp_lg_u64 s[{cmpreg}:{cmpreg+1}], 0\ns_cbranch_scc1 {label}_s', label)
    sch.slow = slow
    rdl = [f'buffer_load_dword v{STMP}, v{STMP+1}, {R4(RDB)}, 0 offen sc1']
    rdt = [f'v_cmp_ne_u32 s[{sCMP}:{sCMP+1}], 32, v{STMP}']
    sch.add('rd', [It(f's_cmp_eq_u32 s{sW}, 0\ns_cselect_b32 s{sCMP}, 0, {OOB}', k='S'), f'v_or_b32 v{STMP+1}, s{sCMP}, v{vL0}', f'v_mov_b32 v{STMP}, 1',
                   f's_and_b32 s{sCMP}, s2, 7', f's_lshl_b32 s{sCMP}, s{sCMP}, 5',
                   It(f'buffer_atomic_add v{STMP}, v{STMP+1}, {R4(RDB)}, s{sCMP} offen sc1', 'RDA', cond=lambda: 'rs' in st),
                   f'v_and_b32 v{STMP+1}, 7, v0', f'v_lshlrev_b32 v{STMP+1}, 5, v{STMP+1}',
                   It(rdl[0], 'RDL', t0=nstart + cfg.get('rd_t', 40)), WV('RDL', 50), rdt[0], slow(f'{nm}_rd', rdl, rdt, sCMP), FN(lambda: st.update(rd=1))], prio=20, key=SCR)

    marks = {}
    def scan(tagp, base, lam, cf, l16, l256, l512q, l16g, pg, qq, eo, rsrd, shf, sfl, t0, prio, prev):
        R = lambda n: base + n
        Im = lambda n: base + 16 + n
        L = []
        if tagp == 'X':
            L += [It(f'buffer_store_dwordx4 v[{R(4*t)}:{R(4*t)+3}], v{STMP+2}, {R4(RWS)}, s{sG} offen offset:{16*t} sc1', 'XST', t0=t0) for t in range(4)]
        for n in range(1, 16):
            L += [It(f'v_fmac_f32 v{R(n)}, v{lam}, v{R(n-1)}', t0=t0), f'v_fmac_f32 v{Im(n)}, v{lam}, v{Im(n-1)}',
                  f'v_fma_f32 v{R(n)}, -v{lam+1}, v{Im(n-1)}, v{R(n)}', f'v_fmac_f32 v{Im(n)}, v{lam+1}, v{R(n-1)}']
        c = lds.alloc(('EA', tagp), EA + eo, 4096)
        L += [f'v_mov_b32 v{qq}, 0', f'v_mov_b32 v{qq+1}, 0', It(f'ds_write_b64 v{vEA}, v[{qq}:{qq+1}] offset:{eo}', tagp + 'EW', cond=c),
              It(f'v_mov_b32 v{qq}, v{R(15)}', gapd=1), f'v_mov_b32 v{qq+1}, v{Im(15)}', It(f'ds_write_b64 v{vEA}, v[{qq}:{qq+1}] offset:{eo + 2048}', tagp + 'EW'),
              WL(tagp + 'EW', 3), 's_barrier', FN(lambda: None, cond=(lambda: prev is None or prev in marks))]
        dst = lambda i: pg if i == 14 else LD + 2 * (i % 5)
        rd = lambda i: It(f'ds_read_b64 v[{dst(i)}:{dst(i)+1}], v{vEA} offset:{eo + 128*(1+i)}', (tagp + 'ER', i))
        L += [rd(i) for i in range(5)]
        for i in range(1, 15):
            L += [WL((tagp + 'ER', i), 4)] + cmac(dst(i), l16, dst(i - 1))
            if i + 4 < 15: L.append(rd(i + 4))
        lds.reader(('EA', tagp), (tagp + 'ER', 14))
        L += [FN(lambda: marks.update({tagp + 'ld': 1}))]
        L += cmac(qq, l16, pg) + [f'v_min_u32 v{qq}, -2, v{qq}', f'v_min_u32 v{qq+1}, -2, v{qq+1}',
                                  It(f'buffer_store_dwordx2 v[{qq}:{qq+1}], v{vEP}, {R4(rsrd)}, 0 offen sc1', tagp + 'EP'), FN(lambda: marks.update({tagp + 'pub': sch.n}))]
        sch.add(tagp + 'pre', L, prio=prio, key=SCR)
        el = [f'buffer_load_dwordx2 v[{TM}:{TM+1}], v{vEL}, {R4(rsrd)}, 0 offen offset:128 sc1', f'buffer_load_dwordx2 v[{TM+2}:{TM+3}], v{vEL}, {R4(rsrd)}, 0 offen offset:256 sc1']
        et = [f'v_max3_u32 v{TM+4}, v{TM}, v{TM+1}, v{TM+2}', f'v_max_u32 v{TM+4}, v{TM+4}, v{TM+3}', f'v_cmp_eq_u32 s[{sCMP+2}:{sCMP+3}], -1, v{TM+4}']
        ok = lambda: 'rd' in st and tagp + 'pub' in marks and (sch.forcing or sch.n >= marks[tagp + 'pub'] + cfg.get('e_delay', 60)) and (tagp == 'S' or 'Sfin' in marks)
        L = [It(el[0], tagp + 'EL', cond=ok), It(el[1], tagp + 'EL'), WV(tagp + 'EL', 50)] + et + [slow(f'{nm}_e{tagp}', el, et, sCMP + 2)]
        L += cmac(TM, l256, TM + 2) + cmul(TM + 2, l512q, TM)
        for k in range(2):
            x, y = TM + 2 + k, TM + k
            L += [f'v_mov_b32 v{y}, v{x}', It(f'v_permlane16_swap_b32 v{x}, v{y}', gapd=2), f'v_add_f32 v{x}, v{x}, v{y}',
                  f'v_mov_b32 v{y}, v{x}', It(f'v_permlane32_swap_b32 v{x}, v{y}', gapd=2), f'v_add_f32 v{x}, v{x}, v{y}']
        L += cmac(pg, l16g, TM + 2) + cmul(TM, cf, pg) + [FN(lambda: marks.update({tagp + 'car': 1}))]
        sch.add(tagp + 'mid', L, prio=prio + 1, key=(SCR if tagp == 'S' else base))
        L = [FN(lambda: None, cond=lambda: tagp + 'car' in marks)]
        pc = TM
        for n in range(16):
            pn = TM + 2 if pc == TM else TM
            t = TM + 4 + (n & 1)
            L += cmul(pn, lam, pc)
            L += [f'v_fma_f32 v{t}, v{cf}, v{R(n)}, v{pn}', f'v_fma_f32 v{t}, -v{cf+1}, v{Im(n)}, v{t}',
                  f'v_fma_f32 v{Im(n)}, v{cf}, v{Im(n)}, v{pn+1}', f'v_fmac_f32 v{Im(n)}, v{cf+1}, v{R(n)}']
            if n & 1:
                L += [f'v_cvt_pk_bf16_f32 v{R(n >> 1)}, v{TM+4}, v{TM+5}', f'v_cvt_pk_bf16_f32 v{Im(n >> 1)}, -v{Im(n-1)}, -v{Im(n)}']
            pc = pn
        c2 = lds.alloc(('TA', tagp), XA, 65536)
        L += [f'v_and_b32 v{TM}, 15, v0', f'v_mul_u32_u24 v{TM}, 144, v{TM}', f'v_and_b32 v{TM+1}, 48, v0', f'v_lshl_add_u32 v{TM}, v{TM+1}, 1, v{TM}',
              f'v_add_u32 v{TM}, s{sMX}, v{TM}']
        for ri in range(2):
            for h in range(2):
                r = base + 16 * ri + 4 * h
                L.append(It(f'ds_write_b128 v{TM}, v[{r}:{r+3}] offset:{ri*2304 + 16*h}', tagp + 'TW'))
        L += [f'v_lshrrev_b32 v{TM+1}, 1, v{TM+1}', f'v_bfe_u32 v{TM+2}, v0, 2, 2', f'v_add_u32 v{TM+1}, v{TM+1}, v{TM+2}', f'v_mul_u32_u24 v{TM+1}, 144, v{TM+1}',
              f'v_and_b32 v{TM+2}, 3, v0', f'v_lshl_add_u32 v{TM+1}, v{TM+2}, 5, v{TM+1}', f'v_add_u32 v{TM+1}, s{sMX}, v{TM+1}', WL(tagp + 'TW', 3)]
        for t in range(4):
            for e in range(2):
                r = base + 4 * t + 2 * e
                L.append(It(f'ds_read_b64_tr_b16 v[{r}:{r+1}], v{TM+1} offset:{e*576 + 8*t}', tagp + ('TR' if (t, e) == (3, 1) else 'TR0')))
        lds.reader(('TA', tagp), tagp + 'TR')
        vo = vST
        if tagp == 'X':
            vo = TM + 2
            L += [f'v_bfe_i32 v{TM+3}, v0, 4, 1', f'v_and_b32 v{TM+3}, {OOB}, v{TM+3}', f's_sub_u32 s{sG}, s{sJJ}, 6', f's_lshl_b32 s{sG}, s{sG}, 8',
                  f'v_add_u32 v{TM+2}, s{sG}, v{vST}', f'v_or_b32 v{TM+2}, v{TM+2}, v{TM+3}']
        L += [WL(tagp + 'TR', 4)]
        L += [It(f'buffer_store_dwordx4 v[{base+4*t}:{base+4*t+3}], v{vo}, {R4(RWS)}, s{shf} offen offset:{1024*t} sc1', tagp + 'ST') for t in range(4)]
        def fin():
            marks[tagp + 'fin'] = 1
            sch.add(tagp + 'flag', [WV(tagp + 'ST', cfg.get('st_age', 130)), It(f'buffer_store_dword v{vRA0}, v{vL0}, {R4(RWS)}, s{sfl} offen sc1', 'FL')], prio=30)
        L.append(FN(fin))
        sch.add(tagp + 'fin', L, prio=(prio + 2 if (B and tagp == 'S') else 58), key=base)
    scan('S', SS, LAMS, CFS, S_L16, S_L256, S_L512Q, S_L16G, S_PG, SQ, 0, RE0, sHFS, sFS, nstart + 4, 40, None)
    if B: scan('X', SX, LAMX, CFX, X_L16, XPK, XPK + 2, XPK + 4, XPK + 6, XQ, 4096, RE1, sHFX, sFX, nstart + 4, 44, 'Sld')

    def outs(G, Uu, dst, t0):
        L = []
        for r in range(4):
            g, u = G + r, Uu + r
            L += [It(f'v_mul_f32 v{u}, v{g}, v{u}', t0=t0), f'v_mul_f32 v{g}, s{sNL}, v{g}', f'v_exp_f32 v{g}, v{g}', f'v_add_f32 v{g}, 1.0, v{g}',
                  f'v_rcp_f32 v{g}, v{g}', f'v_mul_f32 v{g}, v{g}, v{u}']
            if r & 1: L.append(f'v_cvt_pk_bf16_f32 v{dst + (r >> 1)}, v{g-1}, v{g}')
        return L
    lastm = {}
    for u, un in enumerate(U):
        if un['last'] and un.get('m') == 1: lastm[(un['p'], un['bb'])] = 4 * u
    cnt = {}
    def hflag(g, ntot):
        def f():
            cnt[g] = cnt.get(g, 0) + 1
            if cnt[g] == ntot:
                marks[('hst', g)] = sch.n
                sch.add(f'hf{g}', [WV(('ST', g), cfg.get('st_age', 130)), It(f'buffer_store_dword v{vRA0}, v{vL0}, {R4(RWS)}, s{sFH} offen offset:{64*g} sc1', 'FL')], prio=30)
        return FN(f)
    sHp = [sH, 65, 70, 71]
    sch.add('hb', [f's_add_u32 s{sHp[p]}, s{sH}, {4096*p}' for p in range(1, 4)], prio=95)
    for p in range(4):
        E, O = SET(psets[p][0]), SET(psets[p][1])
        for t in range(4):
            L = outs(E + 4 * t, E + 16 + 4 * t, E + 16 + 4 * t, lastm[(p, 0)] + t + 5) + outs(O + 4 * t, O + 16 + 4 * t, E + 18 + 4 * t, lastm[(p, 1)] + t + 5)
            L += [It(f'buffer_store_dwordx4 v[{E+16+4*t}:{E+19+4*t}], v{vST}, {R4(RWS)}, s{sHp[p]} offen offset:{1024*t} sc1', ('ST', p >> 1)), hflag(p >> 1, 8)]
            sch.add(f'e{p}{t}', L, prio=cfg.get('eprio', 50) + p, key=('P', p))
    T = SET(tset)
    for tp in range(2):
        t = 2 * tp
        L = outs(T + 4 * t, T + 16 + 4 * t, T + 16 + 4 * t, lastm[(4, 0)] + t + 5) + outs(T + 4 * t + 4, T + 20 + 4 * t, T + 18 + 4 * t, lastm[(4, 0)] + t + 6)
        L += [It(f'buffer_store_dwordx4 v[{T+16+4*t}:{T+19+4*t}], v{vST}, {R4(RWS)}, s{sHT} offen offset:{1024*tp} sc1', ('ST', 2)), hflag(2, 2)]
        sch.add(f'eT{tp}', L, prio=60, key=('P', 4))

    M = []
    owner = {SET(2): [SCR], SS: [SS], SX: [SX]}
    for u, un in enumerate(U):
        buf = FR + 4 * (u % NF)
        for t in range(4):
            A = un['acc'] + 4 * t
            C = '0' if un['first'] else f'v[{A}:{A+3}]'
            x = xreg(un['s'], un['kp'], t); w = f'v[{buf}:{buf+3}]'
            m = dict(txt=f'v_mfma_f32_16x16x32_bf16 v[{A}:{A+3}], {x if un["swap"] else w}, {w if un["swap"] else x}, {C}', lg=[('F', u), ('XR', un['s'])] if t == 0 else None)
            if un['first'] and t == 0 and un.get('m') == 0:
                keys = list(owner.get(un['key'], []))
                m['pre'] = (lambda keys=keys, u=u: sch.flush(lambda s_: s_.key in keys, why=f'unit {u}'))
                owner[un['key']] = [('P', un['p'])]
                marks[('start', un['p'], un['bb'])] = 4 * u
            M.append(m)
    marks['end'] = len(M)
    marks['tstart'] = marks[('start', 4, 0)]
    if late: M += late(sch, lds, marks, st)
    while sch.read_ok():
        if sch.reads[0]['k'] != 'R': sch.do_barrier(None)
        else: sch.emit_read()
    sch.run(M)
    P.stamp('mfma end')
    sch.report(nm); print('   ', marks)
    return sch, lds, marks
```

```python
from asmlib import *
from lay import *
from sched import *
import ph1
from ph1 import vST, vL0, vRA0, SET, sT0, sT1, sCMP

SL = 40960; HO = 24576
vWV = [22, 23, 24, 25, 26, 27]; vPA, vPD = 28, 29
AD = SET(0)
vAW = lambda h, u: AD + 6 * h + u
vAH = lambda h, g: AD + 12 + 4 * h + g
vAT = lambda g: AD + 20 + g
vT0, vT1, vT2, vT3 = AD + 24, AD + 25, AD + 26, AD + 27
vFP, vOUT, vG, vOG = AD + 28, AD + 29, AD + 30, AD + 31
ACC2 = SET(1)
acc = lambda g, u: ACC2 + 24 * g + 4 * u
HB, NHB = 0, 3
WB, NWB = 48, 8
XD = 64
RWD = RBM
ROUT = RE1
RDS = RE0
sTT, sNT, sWB, sHB, sM6, sM4, sFHC, sSO = 63, 64, 60, 66, 67, 68, 69, 49

def gen(a, name, P, cfg, tails):
    I = a.I
    line = lambda i: 2 * i if i < 8 else (2 * (i - 8) + 1 if i < 16 else i)
    def late(sch, lds, marks, st):
        n0 = marks['end']
        PD = cfg.get('PD2', 4)
        ok = {}
        t_set = marks[('start', 1, 0)]
        L = [It(f's_mul_i32 s{sTT}, s{sIDX}, 43', t0=t_set), f's_lshr_b32 s{sTT}, s{sTT}, 7', f's_mul_i32 s{sNT}, s{sTT}, 3', f's_sub_u32 s{sNT}, s{sIDX}, s{sNT}',
             f's_lshl_b32 s{sWB}, s{sTH}, 3', f's_add_u32 s{sTT}, s{sTT}, s{sWB}',
             f's_mov_b32 s{RWD}, s{S_WD}', f's_and_b32 s{RWD+1}, s{S_WD+1}, 0xffff', f's_mov_b32 s{RWD+2}, {4608*1152}',
             f's_mul_i32 s{sWB}, s{sFQ}, {1152*1152}', f's_mul_i32 s{sM6}, s{sNT}, 384', f's_add_u32 s{sWB}, s{sWB}, s{sM6}',
             f's_lshl_b32 s{sHB}, s{sTT}, 1', f's_lshr_b32 s{sM6}, s{sW}, 1', f's_add_u32 s{sHB}, s{sHB}, s{sM6}', f's_mul_i32 s{sHB}, s{sHB}, 144',
             f's_mul_i32 s{sM6}, s{sFQ}, 36', f's_add_u32 s{sHB}, s{sHB}, s{sM6}', f's_and_b32 s{sM6}, s{sW}, 1', f's_add_u32 s{sHB}, s{sHB}, s{sM6}',
             f's_lshl_b32 s{sHB}, s{sHB}, 12',
             f's_lshl_b32 s{sFHC}, s{sTT}, 2', f's_add_u32 s{sFHC}, s{sFHC}, s{sFQ}', f's_lshl_b32 s{sFHC}, s{sFHC}, 8', f's_add_u32 s{sFHC}, s{sFHC}, {FH_OFF}',
             f'v_lshrrev_b32 v{vPA}, 3, v0', f'v_mul_u32_u24 v{vPA}, 1152, v{vPA}', f'v_and_b32 v{vPD}, 7, v0', f'v_lshl_add_u32 v{vPA}, v{vPD}, 4, v{vPA}',
             f'v_and_b32 v{vPD}, 48, v0', f'v_lshlrev_b32 v{vPD}, 1, v{vPD}', f'v_xor_b32 v{vPD}, v{vPA}, v{vPD}']
        for k in range(3):
            L += [f's_mul_i32 s{sM6}, s{sW}, 6', f's_add_u32 s{sM6}, s{sM6}, {2*k}', f's_and_b32 s{sM4}, s{sM6}, 7', f's_mul_i32 s{sM4}, s{sM4}, 9216',
                  f's_lshr_b32 s{sM6}, s{sM6}, 3', f's_lshl_b32 s{sM6}, s{sM6}, 7', f's_add_u32 s{sM6}, s{sM6}, s{sM4}',
                  f'v_add_u32 v{vWV[2*k]}, s{sM6}, v{vPD}', f'v_add_u32 v{vWV[2*k+1]}, 8192, v{vWV[2*k]}']
        L += [f's_mul_i32 s{sM6}, s{sW}, 6144', f's_lshl_b32 s{sM4}, s{sW}, 12', FN(lambda: ok.update(set=1))]
        sch.add('set2', L, prio=35)
        def done(nm): return not any(s_.name == nm and s_.q for s_ in sch.streams)
        def poll(key, g, w0, nw, t0):
            ld = [f'buffer_load_dword v{vPD}, v{vPA}, {R4(RWS)}, s{sFHC} offen offset:{64*g + 4*w0} sc1']
            ts = [f'v_cmp_eq_u32 s[{sCMP}:{sCMP+1}], 0, v{vPD}']
            own = lambda: 'set' in ok and 'rd' in st and ('hst', g) in marks and done(f'hf{g}') and 'Sfin' in marks and done('Sflag')
            return [It(f'v_min_u32 v{vPA}, {nw-1}, v0', t0=t0 - 4, cond=own), f'v_lshlrev_b32 v{vPA}, 2, v{vPA}',
                    It(ld[0], ('HP', key), t0=t0), WV(('HP', key), cfg.get('poll_age', 40)), ts[0],
                    sch.slow(f'{name}_hp{key}', ld, ts, sCMP), FN(lambda: (ok.update({key: 1}), marks.update({('poll', key): sch.n})))]
        tpre = marks[('start', 3, 0)] + cfg.get('pre_t', 100)
        sch.add('poll', poll(0, 0, 0, 12, n0 - cfg.get('poll0', 240)) + poll(1, 0, 12, 4, n0 + 120) + poll(2, 1, 0, 12, n0 + 216) + poll(3, 1, 12, 4, n0 + 504) +
                poll(4, 2, 0, 16, n0 + 600), prio=15)
        sch.dt_from = n0
        DW, DH = [], []
        for i in range(18):
            base = (i % 4) * SL
            cw = lds.alloc(('G', i), base, HO); ch = lds.alloc(('G', i), base + HO, SL - HO)
            g = 0 if i < 6 else (1 if i < 8 else (2 if i < 14 else (3 if i < 16 else 4)))
            gd = cfg.get('pgap', 8) if i < 2 else 0
            W = []
            for k in range(3):
                W += sch.grp([f's_add_u32 m0, s{sM6}, {base + 2048*k}', f's_add_u32 s{sSO}, s{sWB}, {line(i)*64*1152}'] +
                             [It(f'buffer_load_dwordx4 v{vWV[2*k+e]}, {R4(RWD)}, s{sSO} offen offset:{1024*e} lds', ('G', i), gapd=(gd if e else 0)) for e in range(2)],
                             cond=(lambda cw=cw: cw() and 'set' in ok), t0=tpre, gapd=gd)
            H = sch.grp([f's_add_u32 m0, s{sM4}, {base + HO}', f's_add_u32 s{sSO}, s{sHB}, {H_OFF + line(i)*8192}'] +
                        [It(f'buffer_load_dwordx4 v{vST}, {R4(RWS)}, s{sSO} offen offset:{1024*t} sc1 lds', ('G', i), gapd=(gd if t else 0)) for t in range(4)],
                        cond=(lambda ch=ch, g=g: ch() and g in ok), gapd=gd)
            if i < 2: DW += W; DH += H
            else: DH += H + W
        sch.add('dma2', DW + DH, prio=12)
        free0 = lambda: not any(s_.key == ('P', 2) and s_.q for s_ in sch.streams)
        L = [It(f'v_lshrrev_b32 v{vT0}, 2, v0', t0=marks['tstart'] - 40, cond=lambda: free0() and 'set' in ok), f'v_lshlrev_b32 v{vT0}, 7, v{vT0}', f'v_bfe_u32 v{vT1}, v0, 3, 2',
             f'v_lshl_add_u32 v{vT0}, v{vT1}, 5, v{vT0}', f'v_and_b32 v{vT1}, 3, v0', f'v_lshl_add_u32 v{vT0}, v{vT1}, 3, v{vT0}',
             f's_lshr_b32 s{sT1}, s{sW}, 1', f's_mul_i32 s{sT1}, s{sT1}, 6']
        for u in range(6):
            L += [f's_and_b32 s{sCMP+2}, s{sT1}, 3', f's_lshl_b32 s{sCMP+2}, s{sCMP+2}, 5', f's_lshr_b32 s{sCMP+3}, s{sT1}, 2', f's_lshl_b32 s{sCMP+3}, s{sCMP+3}, 13',
                  f's_or_b32 s{sCMP+2}, s{sCMP+2}, s{sCMP+3}', f'v_xor_b32 v{vAW(0, u)}, s{sCMP+2}, v{vT0}', f'v_add_u32 v{vAW(1, u)}, {2*SL}, v{vAW(0, u)}',
                  f's_add_u32 s{sT1}, s{sT1}, 1']
        L += [f's_and_b32 s{sT1}, s{sW}, 1', f's_lshl_b32 s{sT1}, s{sT1}, 13', f's_add_u32 s{sT1}, s{sT1}, {HO}', f'v_add_u32 v{vT0}, s{sT1}, v{vST}']
        for g in range(4):
            L += [f's_xor_b32 s{sT1}, s{sFQ}, {g}', f's_lshl_b32 s{sCMP+2}, s{sT1}, 10', f'v_add_u32 v{vAH(0, g)}, s{sCMP+2}, v{vT0}', f'v_add_u32 v{vAH(1, g)}, {2*SL}, v{vAH(0, g)}',
                  f's_lshr_b32 s{sCMP+2}, s{sT1}, 1', f's_lshl_b32 s{sCMP+2}, s{sCMP+2}, 10', f's_and_b32 s{sT1}, s{sT1}, 1', f's_lshl_b32 s{sT1}, s{sT1}, 3',
                  f's_add_u32 s{sT1}, s{sT1}, s{sCMP+2}', f'v_add_u32 v{vAT(g)}, s{sT1}, v{vT0}']
        L += [FN(lambda: ok.update(adr=1))]
        sch.add('adr2', L, prio=45, key='adr2')
        M = []
        NK = 36
        mi = lambda k, u: n0 + 24 * k + 4 * u
        def hread(k, g, free):
            i, kp = divmod(k, 2); r = HB + 16 * (k % NHB) + 4 * g
            off = (i % 2) * SL + kp * 4096
            if i < 16:
                sch.reads.append(dict(k='R', txt=f'ds_read_b128 a[{r}:{r+3}], v{vAH((i % 4) >> 1, g)} offset:{off}', tag=('HR', k), free=free, use=mi(k, 0)))
            else:
                for e in range(2):
                    sch.reads.append(dict(k='R', txt=f'ds_read_b64 a[{r+2*e}:{r+2*e+1}], v{vAT(g)} offset:{off + 2048*e}', tag=('HR', k), free=free, use=mi(k, 0)))
        def bar(i, free):
            sch.reads.append(dict(k='B', vm=[('G', i)], free=free, name=f'g{i}', fn=(lambda: sch.flush(lambda s_: s_.key == 'adr2', why='adr2')) if i == 0 else None))
        lo = n0 - 15
        bar(0, lo - 1)
        for g in range(4): hread(0, g, lo)
        for k in range(NK):
            i, kp = divmod(k, 2)
            for u in range(6):
                un = 6 * k + u
                free = max(n0 + 4 * (un - PD), lo)
                if k + 1 < NK and u >= 2:
                    if u == 2 and kp == 1: bar(i + 1, free - 1)
                    hread(k + 1, u - 2, free)
                if kp == 0 and u == PD + 1 and i + 3 < 18 and i > 0:
                    sch.reads.append(dict(k='B', vm=[], free=free - 1))
                r = WB + 4 * (un % NWB)
                off = (i % 2) * SL + kp * 4096
                for e in range(2):
                    sch.reads.append(dict(k='R', txt=f'ds_read_b64_tr_b16 a[{r+2*e}:{r+2*e+1}], v{vAW((i % 4) >> 1, u)} offset:{off + 2048*e}', tag=('WR', un), free=free, use=mi(k, u)))
                lds.reader(('G', i), ('WR', un))
                for g in range(4):
                    A = acc(g, u); h = HB + 16 * (k % NHB) + 4 * g
                    C = '0' if k == 0 else f'v[{A}:{A+3}]'
                    m = dict(txt=f'v_mfma_f32_16x16x32_bf16 v[{A}:{A+3}], a[{r}:{r+3}], a[{h}:{h+3}], {C}', lg=[('WR', un), ('HR', k)] if g == 0 else None)
                    if un == 0 and g == 0:
                        m['pre'] = lambda: (sch.flush(lambda s_: s_.key in (('P', 2), ('P', 3)), why='gemm2 start'), P.stamp('p2 start'))
                    M.append(m)
        tf = n0 + 48 * 6
        XL = 40; DL = 52
        sGA, sXO = 70, 71
        gl = [f'buffer_load_dword v{vT1}, v{vT0}, {R4(RWS)}, s{sGA} offen sc1']
        gt = [f'v_cmp_eq_u32 s[{sCMP+2}:{sCMP+3}], 0, v{vT1}']
        L = [It(f's_lshl_b32 s{sXO}, s{sTT}, 1', t0=tf), f's_and_b32 s{sT1}, s{sW}, 1', f's_add_u32 s{sXO}, s{sXO}, s{sT1}',
             f's_lshl_b32 s{sGA}, s{sXO}, 8', f's_add_u32 s{sGA}, s{sGA}, {FS_OFF + 128}', f'v_mov_b32 v{vT0}, 0',
             It(gl[0], 'GP'), WV('GP', 40), gt[0], sch.slow(f'{name}_gp', gl, gt, sCMP + 2),
             f'v_bfe_u32 v{vT0}, v0, 2, 2', f'v_lshlrev_b32 v{vT0}, 4, v{vT0}', f'v_and_b32 v{vT1}, 3, v0', f's_lshl_b32 s{sT1}, s{sXO}, 4', f's_add_u32 s{sT1}, s{sT1}, s{sFQ}',
             f's_lshl_b32 s{sT1}, s{sT1}, 2', f'v_add3_u32 v{vT0}, v{vT0}, v{vT1}, s{sT1}',
             f'v_lshlrev_b32 v{vT1}, 2, v{vT0}', f's_mov_b32 s{sGA}, {G_OFF}', It(f'buffer_load_dword v{vG}, v{vT1}, {R4(RWS)}, s{sGA} offen sc1', 'FI'),
             f's_lshl_b32 s{sT1}, s{sNT}, 1', f's_lshr_b32 s{sGA}, s{sW}, 1', f's_add_u32 s{sT1}, s{sT1}, s{sGA}', f's_mul_i32 s{sT1}, s{sT1}, 192',
             f'v_lshrrev_b32 v{vT2}, 4, v0', f'v_lshlrev_b32 v{vT2}, 3, v{vT2}', f'v_add_u32 v{vT2}, s{sT1}, v{vT2}',
             f'v_mul_u32_u24 v{vT0}, 1152, v{vT0}', f'v_add_u32 v{vT0}, v{vT0}, v{vT2}', f'v_lshlrev_b32 v{vOUT}, 1, v{vT0}',
             f's_mov_b32 s{RDS}, s{S_DSK}', f's_and_b32 s{RDS+1}, s{S_DSK+1}, 0xffff', f's_mov_b32 s{RDS+2}, 1152',
             f's_mov_b32 s{ROUT}, s{S_OUT}', f's_and_b32 s{ROUT+1}, s{S_OUT+1}, 0xffff', f's_mov_b32 s{ROUT+2}, {2048*2304}', f's_mov_b32 s{ROUT+3}, 0x20000']
        tx = n0 + 48 * cfg.get('x_t', 15)
        for u in range(6):
            L += [It(f'buffer_load_dwordx2 v[{XL+2*u}:{XL+2*u+1}], v{vT0}, {R4(RX)}, 0 offen offset:{32*u}', 'FI', t0=tx, gapd=4),
                  It(f'buffer_load_dwordx2 v[{DL+2*u}:{DL+2*u+1}], v{vT2}, {R4(RDS)}, 0 offen offset:{32*u}', 'FI')]
        L += [WV('FI', 40)]
        L += [f'v_cvt_pk_bf16_f32 v{vG}, v{vG}, v{vG}', f'v_lshlrev_b32 v{vG}, 16, v{vG}', f'v_mul_f32 v{vG}, s{ph1.sNL}, v{vG}', f'v_exp_f32 v{vG}, v{vG}',
              f'v_add_f32 v{vG}, 1.0, v{vG}', f'v_rcp_f32 v{vG}, v{vG}', f'v_cvt_pk_bf16_f32 v{vG}, v{vG}, v{vG}', f'v_lshlrev_b32 v{vG}, 16, v{vG}',
              f'v_sub_f32 v{vOG}, 1.0, v{vG}', f'v_cvt_pk_bf16_f32 v{vOG}, v{vOG}, v{vOG}', f'v_lshlrev_b32 v{vOG}, 16, v{vOG}']
        for d in range(12):
            x, k, o = XL + d, DL + d, XD + 2 * d
            L += [f'v_lshlrev_b32 v{o}, 16, v{x}', f'v_lshlrev_b32 v{o+1}, 16, v{k}', f'v_mul_f32 v{o}, v{o}, v{o+1}',
                  f'v_and_b32 v{x}, 0xffff0000, v{x}', f'v_and_b32 v{k}, 0xffff0000, v{k}', f'v_mul_f32 v{x}, v{x}, v{k}',
                  f'v_cvt_pk_bf16_f32 v{x}, v{o}, v{x}', f'v_lshlrev_b32 v{o}, 16, v{x}', f'v_and_b32 v{o+1}, 0xffff0000, v{x}']
        sch.add('fin', L, prio=70)
        return M

    sch, lds, marks = ph1.gen_phase1(a, name, False, P, cfg, tails, late)
    sch.flush(why='end')
    sPX = [40, 41, 42]; sRX = 43; sAP = 44; sFA = 45; sFPC = 46
    I(f's_mul_i32 s47, s{sTH}, 24')
    I(f's_add_u32 s47, s47, s{sIDX}')
    I('s_lshl_b32 s47, s47, 2')
    for g in (1, 2, 3):
        I(f's_xor_b32 s48, s{sFQ}, {g}')
        I('s_add_u32 s48, s48, s47')
        I('s_lshl_b32 s48, s48, 2')
        I(f's_add_u32 s48, s48, s{sW}')
        I(f's_mul_i32 s{sPX[g-1]}, s48, 9216')
        I(f's_add_u32 s{sPX[g-1]}, s{sPX[g-1]}, {PX_OFF + 3072*(g-1)}')
        for i in range(3):
            r = acc(g, 2 * i)
            for d in range(4): I(f'v_cvt_pk_bf16_f32 v{r+d}, v{r+2*d}, v{r+2*d+1}')
            I(f'buffer_store_dwordx4 v[{r}:{r+3}], v{vST}, {R4(RWS)}, s{sPX[g-1]} offen offset:{1024*i} sc1', 'PS')
    P.stamp('sent')
    I(f's_lshl_b32 s{sFA}, s71, 1')
    I(f's_lshr_b32 s48, s{sFQ}, 1')
    I(f's_add_u32 s{sFA}, s{sFA}, s48')
    I(f's_lshl_b32 s{sFA}, s{sFA}, 7')
    I(f's_add_u32 s{sFA}, s{sFA}, {FA_OFF}')
    I(f'v_and_b32 v{vT0}, 3, v0')
    I(f'v_lshlrev_b32 v{vT0}, 2, v{vT0}')
    al = [f'buffer_load_dword v{vT1}, v{vT0}, {R4(RWS)}, s{sFA} offen sc1']
    at = [f'v_cmp_eq_u32 s[{sCMP}:{sCMP+1}], 0, v{vT1}']
    I(al[0], 'AF')
    I(f'v_mov_b32 v{vFP}, {OOB}')
    for g in (1, 2, 3):
        cfg['fp_addr'](a, g, 48, sT1)
        I(f'v_writelane_b32 v{vFP}, s48, {g}')
    I(f's_add_u32 s48, s47, s{sFQ}')
    I('s_lshl_b32 s48, s48, 2')
    I(f's_add_u32 s48, s48, s{sW}')
    I(f's_mul_i32 s{sRX}, s48, 9216')
    I(f's_add_u32 s{sRX}, s{sRX}, {PX_OFF}')
    I(f's_lshl_b32 s{sFPC}, s48, 6')
    I(f's_add_u32 s{sFPC}, s{sFPC}, {FP_OFF}')
    I(f's_lshl_b32 s{sAP}, s71, 2')
    I(f's_add_u32 s{sAP}, s{sAP}, s{sFQ}')
    I(f's_mul_i32 s{sAP}, s{sAP}, 6')
    I(f's_lshl_b32 s48, s{sNT}, 1')
    I(f's_add_u32 s{sAP}, s{sAP}, s48')
    I(f's_lshr_b32 s48, s{sW}, 1')
    I(f's_add_u32 s{sAP}, s{sAP}, s48')
    I(f's_mul_i32 s{sAP}, s{sAP}, 6144')
    I(f's_add_u32 s{sAP}, s{sAP}, {AP_OFF}')
    I(f'v_min_u32 v{vT2}, 2, v0')
    I(f'v_lshlrev_b32 v{vT2}, 2, v{vT2}')
    a.wait(vm='PS')
    I(f'buffer_store_dword v{vRA0}, v{vFP}, {R4(RWS)}, 0 offen sc1', 'FL')
    P.stamp('acked')
    a.wait(vm='AF')
    I(at[0])
    b = sch.slow(f'{name}_af', al, at, sCMP)
    I('s_nop 1'); I(b.txt); a.label(b.tag)
    AV = acc(1, 0)
    I(f's_add_u32 s48, s{sAP}, 4096')
    for u in range(6):
        I(f'buffer_load_dwordx4 v[{AV+4*u}:{AV+4*u+3}], v{vST}, {R4(RWS)}, s{sAP if u < 4 else 48} offen offset:{1024*(u % 4)} sc1', 'AL')
    pl = [f'buffer_load_dword v{vT1}, v{vT2}, {R4(RWS)}, s{sFPC} offen sc1']
    pt = [f'v_cmp_eq_u32 s[{sCMP}:{sCMP+1}], 0, v{vT1}']
    I(pl[0], 'PF')
    a.wait(vm='AL')
    for d in range(24):
        I(f'v_add_f32 v{AV+d}, v{AV+d}, v{XD+d}')
        I(f'v_mul_f32 v{AV+d}, v{vG}, v{AV+d}')
    a.wait(vm='PF')
    I(pt[0])
    b = sch.slow(f'{name}_pf', pl, pt, sCMP)
    I('s_nop 1'); I(b.txt); a.label(b.tag)
    P.stamp('flags')
    RV = acc(2, 0)
    for g in range(3):
        if g: I(f's_add_u32 s{sRX}, s{sRX}, 3072')
        for i in range(3):
            r = RV + 12 * g + 4 * i
            I(f'buffer_load_dwordx4 v[{r}:{r+3}], v{vST}, {R4(RWS)}, s{sRX} offen offset:{1024*i} sc1', ('RL', g, i))
    I('s_mov_b32 s47, 0x00003f80')
    I('s_mov_b32 s48, 0x3f800000')
    O = acc(0, 0)
    for g in range(3):
        for i in range(3):
            a.wait(vm=('RL', g, i))
            for d in range(4):
                r = RV + 12 * g + 4 * i + d; o = O + 8 * i + 2 * d
                I(f'v_dot2_f32_bf16 v{o}, v{r}, s47, v{o}')
                I(f'v_dot2_f32_bf16 v{o+1}, v{r}, s48, v{o+1}')
            if g == 2:
                I('s_nop 2')
                for d in range(8): I(f'v_fmac_f32 v{AV+8*i+d}, v{vOG}, v{O+8*i+d}')
                for u in (2 * i, 2 * i + 1):
                    I(f'buffer_store_dwordx4 v[{AV+4*u}:{AV+4*u+3}], v{vOUT}, {R4(ROUT)}, 0 offen offset:{64*u}')
    P.stamp('stored')
    return sch
```

```python
from asmlib import *
from lay import *
from sched import *
import ph1
from ph1 import vST, vL0, vRA0, SET, sT0, sT1, sCMP

SL = 36864
vC = [33, 34, 35, 36]; vPA, vPD = 37, 38
AD = SET(0)
vAC = lambda h, kp: AD + 4 * h + kp
ACC2 = SET(0) + 16
acc = lambda tl, u: ACC2 + 36 * tl + 4 * u
HB, NHB = 0, 16
CB, NCB = 128, 12
RC = RBM
sTT, sHB, sM9, sFSC, sSO, sSO2 = 80, 81, 72, 73, 49, 84

def gen(a, name, P, cfg, tails):
    I = a.I
    def late(sch, lds, marks, st):
        n0 = marks['end']
        PD = cfg.get('PD3', 8)
        ok = {}
        t_set = marks[('start', 1, 0)]
        L = [It(f's_lshl_b32 s{sTT}, s{sTH}, 3', t0=t_set), f's_add_u32 s{sTT}, s{sTT}, s{sIDX}', f's_sub_u32 s{sTT}, s{sTT}, 24',
             It(f's_cmp_lt_u32 s{sW}, 2\ns_cselect_b32 s{RC}, s{S_CRE}, s{S_CIM}\ns_cselect_b32 s{RC+1}, s{S_CRE+1}, s{S_CIM+1}', k='S'),
             f's_and_b32 s{RC+1}, s{RC+1}, 0xffff',
             f's_lshl_b32 s{sHB}, s{sTT}, 1', f's_lshr_b32 s{sM9}, s{sW}, 1', f's_add_u32 s{sHB}, s{sHB}, s{sM9}',
             f's_lshl_b32 s{sFSC}, s{sHB}, 8', f's_add_u32 s{sFSC}, s{sFSC}, {FS_OFF}',
             f's_mul_i32 s{sHB}, s{sHB}, {36*4096}', f's_and_b32 s{sM9}, s{sW}, 1', f's_lshl_b32 s{sSO2}, s{sM9}, 11', f's_add_u32 s{sHB}, s{sHB}, s{sSO2}',
             f's_add_u32 s{sHB}, s{sHB}, {HF_OFF}',
             f'v_and_b32 v{vPA}, 7, v0', f'v_lshrrev_b32 v{vPD}, 4, v0', f'v_xor_b32 v{vPA}, v{vPA}, v{vPD}', f'v_lshlrev_b32 v{vPA}, 4, v{vPA}',
             f's_lshl_b32 s{sSO2}, s{sM9}, 6', f'v_xor_b32 v{vPA}, s{sSO2}, v{vPA}',
             f's_lshl_b32 s{sSO2}, s{sFQ}, 1', f's_add_u32 s{sSO2}, s{sSO2}, s{sM9}', f's_mul_i32 s{sSO2}, s{sSO2}, 72',
             f'v_lshrrev_b32 v{vPD}, 3, v0', f'v_add_u32 v{vPD}, s{sSO2}, v{vPD}', f'v_mul_u32_u24 v{vPD}, 1152, v{vPD}', f'v_add_u32 v{vC[0]}, v{vPD}, v{vPA}',
             f'v_xor_b32 v{vC[1]}, 64, v{vC[0]}', f'v_add_u32 v{vC[1]}, 8192, v{vC[1]}', f'v_add_u32 v{vC[2]}, 16384, v{vC[0]}', f'v_add_u32 v{vC[3]}, 16384, v{vC[1]}',
             f's_mul_i32 s{sM9}, s{sW}, 9216', f'v_min_u32 v{vPA}, 39, v0', f'v_lshlrev_b32 v{vPA}, 2, v{vPA}', FN(lambda: ok.update(set=1))]
        sch.add('set2', L, prio=35)
        ld = [f'buffer_load_dword v{vPD}, v{vPA}, {R4(RWS)}, s{sFSC} offen sc1']
        ts = [f'v_cmp_eq_u32 s[{sCMP}:{sCMP+1}], 0, v{vPD}']
        own = lambda: 'Xfin' in marks and not any(s_.name in ('Sflag', 'Xflag') and s_.q for s_ in sch.streams)
        sch.add('poll', [It(ld[0], 'SP', t0=n0 - cfg.get('sp_t', 90), cond=lambda: 'set' in ok and 'rd' in st and own(), gapd=0), WV('SP', 40), ts[0],
                         sch.slow(f'{name}_sp', ld, ts, sCMP), FN(lambda: ok.update(h=1))], prio=15, key='poll')
        sch.dt_from = n0
        tpre = marks[('start', 3, 0)] + cfg.get('pre_t', 100)
        mi = lambda kap, u: n0 + 18 * kap + 2 * u
        D = []
        for i in range(9):
            base = (i % 4) * SL
            c = lds.alloc(('C', i), base, SL)
            gd = cfg.get('pgap', 8) if i < 2 else 0
            for k, ps in enumerate(([0, 1, 2, 3], [0, 1, 2, 3], [0])):
                D += sch.grp([f's_add_u32 m0, s{sM9}, {base + 4096*k}', f's_mov_b32 s{sSO}, {128*i + 4*9216*k}'] +
                             [It(f'buffer_load_dwordx4 v{vC[p]}, {R4(RC)}, s{sSO} offen offset:{1024*p} lds', ('C', i), gapd=(gd if p else 0)) for p in ps],
                             cond=(lambda c=c: c() and 'set' in ok), t0=tpre, gapd=gd)
        sch.add('dma2', D, prio=13)
        Hs = []
        for kap in range(36):
            r = HB + 8 * (kap % NHB)
            t0 = marks['tstart'] + 16 * (kap // 4 + 1) if kap < NHB else mi(kap - NHB + 1, 0)
            t0 = max(t0, mi(kap - cfg.get('hdepth', 12), 0))
            Hs += [It(f's_add_u32 s{sSO2}, s{sHB}, {4096*kap}', t0=t0, cond=lambda: 'h' in ok)]
            Hs += [It(f'buffer_load_dwordx4 a[{r+4*tl}:{r+4*tl+3}], v{vST}, {R4(RWS)}, s{sSO2} offen offset:{1024*tl} sc1', ('h', kap)) for tl in range(2)]
        sch.add('hld', Hs, prio=12)
        free0 = lambda: not any(s_.key == ('P', 2) and s_.q for s_ in sch.streams)
        T0, T1 = AD + 8, AD + 9
        L = [It(f'v_and_b32 v{T0}, 15, v0', t0=marks['tstart'] - 40, cond=free0), f'v_lshrrev_b32 v{T1}, 1, v{T0}', f'v_bfe_u32 v{vAC(0, 0)}, v0, 4, 1',
             f'v_xor_b32 v{T1}, v{T1}, v{vAC(0, 0)}', f'v_lshlrev_b32 v{T1}, 4, v{T1}', f'v_lshl_add_u32 v{T0}, v{T0}, 7, v{T1}',
             f'v_lshrrev_b32 v{T1}, 5, v0', f'v_mul_u32_u24 v{T1}, 18432, v{T1}', f'v_add_u32 v{vAC(0, 0)}, v{T0}, v{T1}']
        L += [f'v_xor_b32 v{vAC(0, kp)}, {32*kp}, v{vAC(0, 0)}' for kp in range(1, 4)]
        L += [f'v_add_u32 v{vAC(1, kp)}, {2*SL}, v{vAC(0, kp)}' for kp in range(4)]
        sch.add('adr2', L, prio=45, key='adr2')
        M = []
        lo = n0 - 15
        for kap in range(36):
            i, kp = divmod(kap, 4)
            for u in range(9):
                un = 9 * kap + u
                free = max(n0 + 2 * (un - PD), lo)
                if u == 0 and kp == 0:
                    sch.reads.append(dict(k='B', vm=[('C', i)], free=free - 1, name=f'c{i}', fn=(lambda: sch.flush(lambda s_: s_.key == 'adr2', why='adr2')) if i == 0 else None))
                if kp == 1 and u == 1 and 0 < i < 6:
                    sch.reads.append(dict(k='B', vm=[], free=free - 1))
                if u == PD - 2 or (kap == 0 and u == 0 and False):
                    pass
                r = CB + 4 * (un % NCB)
                sch.reads.append(dict(k='R', txt=f'ds_read_b128 a[{r}:{r+3}], v{vAC((i % 4) >> 1, kp)} offset:{(i % 2)*SL + 2048*u}', tag=('CR', un), free=free, use=mi(kap, u)))
                lds.reader(('C', i), ('CR', un))
                for tl in range(2):
                    A = acc(tl, u); h = HB + 8 * (kap % NHB) + 4 * tl
                    C = '0' if kap == 0 else f'v[{A}:{A+3}]'
                    m = dict(txt=f'v_mfma_f32_16x16x32_bf16 v[{A}:{A+3}], a[{r}:{r+3}], a[{h}:{h+3}], {C}', lg=[('CR', un)] if tl == 0 else None)
                    if u == 0 and tl == 0:
                        def pre(kap=kap):
                            if kap == 0:
                                sch.flush(lambda s_: s_.key in (('P', 2), ('P', 3)) or s_.name in ('Sflag', 'Xflag'), why='cgemm start')
                                sch.flush(lambda s_: s_.key == 'poll', why='cgemm poll')
                                P.stamp('p2 start')
                            hs = next((s_ for s_ in sch.streams if s_.name == 'hld'), None)
                            while hs and any(it.tag == ('h', kap) for it in hs.q): sch.pop(hs); sch.forced += 1
                            sch.wait(vm=('h', kap))
                        m['pre'] = pre
                    M.append(m)
        return M
    sch, lds, marks = ph1.gen_phase1(a, name, True, P, cfg, tails, late)
    sch.flush(why='end')
    I(f's_lshl_b32 s40, s{sTT}, 2')
    I(f's_add_u32 s40, s40, s{sW}')
    I('s_lshl_b32 s40, s40, 3')
    I(f's_add_u32 s40, s40, s{sFQ}')
    I('s_mul_i32 s40, s40, 9216')
    I(f's_add_u32 s40, s40, {AP_OFF}')
    for u in range(9):
        for tl in range(2):
            if u % 4 == 0: I(f's_add_u32 s{41+tl}, s40, {tl*36864 + 1024*u}')
            A = acc(tl, u)
            I(f'buffer_store_dwordx4 v[{A}:{A+3}], v{vST}, {R4(RWS)}, s{41+tl} offen offset:{1024*(u % 4)} sc1', 'AS')
    cfg['fa_addr'](a, 43, 44)
    a.wait(vm='AS')
    I(f'buffer_store_dword v{vRA0}, v{vL0}, {R4(RWS)}, s43 offen sc1')
    P.stamp('stored')
    return sch
```

```python
from lay import *
class Prof:
    def __init__(self, a, on, vreg):
        self.a, self.on, self.v = a, on, vreg
        self.n = 0; self.pend = []; self.names = []
    def fork(self):
        p = Prof(self.a, self.on, self.v); p.n = self.n; p.pend = list(self.pend); p.names = list(self.names); return p
    def stamp(self, name=''):
        if not self.on: return
        n = self.n; r = 92 + 2 * (n % 4)
        if len(self.pend) >= 4:
            m, rr = self.pend.pop(0); self.a.I(f'v_writelane_b32 v{self.v}, s{rr}, {m}')
        self.a.I(f'{"s_memrealtime" if self.on == 2 else "s_memtime"} s[{r}:{r+1}]')
        self.pend.append((n, r)); self.n += 1; self.names.append(name)
        assert self.n <= 62
        if n == 0: self.a.I('s_memrealtime s[100:101]')
    def dump(self, vtmp, stmp):
        if not self.on: return
        I = self.a.I
        I('s_waitcnt vmcnt(0) lgkmcnt(0)')
        self.stamp('end')
        I(f'v_writelane_b32 v{self.v}, s100, 62')
        I('s_memrealtime s[100:101]')
        I('s_waitcnt lgkmcnt(0)')
        for m, rr in self.pend: I(f'v_writelane_b32 v{self.v}, s{rr}, {m}')
        self.pend = []
        I(f'v_writelane_b32 v{self.v}, s100, 63')
        I(f's_lshl_b32 s{stmp}, s2, 2\ns_add_u32 s{stmp}, s{stmp}, s{sW}\ns_lshl_b32 s{stmp}, s{stmp}, 8\ns_add_u32 s{stmp}, s{stmp}, {PROF_OFF}')
        I(f'v_lshlrev_b32 v{vtmp}, 2, v0')
        I(f'buffer_store_dword v{self.v}, v{vtmp}, {R4(RWS)}, s{stmp} offen')
```

```python
from collections import deque
from asmlib import *

def kind_of(txt):
    op = txt.split()[0]
    if op.startswith(('buffer_', 'global_')): return 'V'
    if op.startswith('ds_write_b128'): return 'W'
    if op.startswith('ds_'): return 'D'
    if op.startswith('s_'): return 'S'
    if op.replace('_e32', '').replace('_e64', '') in TRANS: return 'T'
    return 'P'

class It:
    __slots__ = ('k', 'txt', 'tag', 'cond', 't0', 'gapd', 'age', 'fn')
    def __init__(s, txt=None, tag=None, cond=None, t0=-99, gapd=0, k=None, age=0, fn=None):
        s.txt, s.tag, s.cond, s.t0, s.gapd, s.age, s.fn = txt, tag, cond, t0, gapd, age, fn
        s.k = k or kind_of(txt)
def WL(tag, age=6): return It(k='WL', tag=tag, age=age)
def WV(tag, age=100): return It(k='WV', tag=tag, age=age)
def FN(fn, cond=None): return It(k='F', fn=fn, cond=cond)
def BR(txt, label, gapd=2): return It(txt=txt, k='B', tag=label, gapd=gapd)

class Stream:
    def __init__(s, name, items, prio=50, key=None):
        s.name, s.prio, s.key = name, prio, key
        s.q = deque(It(i) if isinstance(i, str) else i for i in items)
        s.last = -99

class Sched:
    LGAGE = 6
    def __init__(s, a, P=None):
        s.a, s.P = a, P
        s.n = -1
        s.streams = []
        s.reads = deque()
        s.lg_n = [-99] * len(a.lg); s.vm_n = [-99] * len(a.vm)
        s.est = 0; s.gapk = []; s.forced = 0; s.hist = {}
        s.on_barrier = []; s.forcing = False; s.lock = None; s.dt_from = 1 << 30
        s.log = []
    def E(s, txt, tag=None, k=None):
        n0 = s.a.nops
        s.a.I(txt, tag)
        if s.a.nops != n0: s.gapk.append('S'); s.log.append((s.n, 'nop before ' + txt))
        s.gapk.append(k or kind_of(txt))
        s._sync()
    def _sync(s):
        while len(s.lg_n) < len(s.a.lg): s.lg_n.append(s.n)
        while len(s.vm_n) < len(s.a.vm): s.vm_n.append(s.n)
    def wait(s, vm=None, lg=None):
        k = len(s.a.lines)
        s.a.wait(vm=vm, lg=lg)
        if len(s.a.lines) != k: s.gapk.append('S'); return True
        return False
    def close_gap(s):
        cur = 4; mm = 16; prev = None
        for k in s.gapk:
            if k == 'S': cur += 4
            elif k == 'P': cur = max(cur, 8) + 4
            elif k == 'T': cur = max(cur, 8) + 8
            elif k == 'D':
                t = max(cur, 8) + (4 if prev in ('P', 'T') else 0); cur = t + 4; mm = max(mm, t + 8)
            elif k == 'V': cur = cur + (4 if prev in ('P', 'T') else 0) + 12
            elif k == 'W': cur = max(cur, 8) + 20
            prev = k
        c = max(mm, cur)
        s.est += c
        key = ''.join(s.gapk) if len(s.gapk) < 8 else 'long'
        s.hist[key] = s.hist.get(key, 0) + 1
        if c > 16: s.log.append((s.n, f'gap {c}: ' + ''.join(s.gapk)))
        s.gapk = []
    def add(s, name, items, prio=50, key=None):
        st = Stream(name, items, prio, key); s.streams.append(st); s.streams.sort(key=lambda x: x.prio); return st
    def grp(s, items, cond=None, t0=-99, gapd=0):
        me = object()
        def acq(): s.lock = me
        def rel(): s.lock = None
        h = FN(acq, cond=lambda: s.lock is None and (cond is None or cond()))
        h.t0 = t0; h.gapd = gapd
        return [h] + list(items) + [FN(rel)]
    def _age(s, q, qn, tag):
        tags = tag if isinstance(tag, list) else [tag]
        idx = [i for i, t in enumerate(q) if t in tags]
        assert idx, tag
        return s.n - qn[idx[-1]]
    def head(s, st):
        while st.q:
            it = st.q[0]
            if it.t0 > s.n or (it.cond and not it.cond()) or s.n - st.last < it.gapd: return None
            if it.k == 'F': st.q.popleft(); it.fn(); continue
            if it.k == 'WL':
                if s.a.need_lg(it.tag) is None: st.q.popleft(); continue
                return it if s._age(s.a.lg, s.lg_n, it.tag) >= it.age else None
            if it.k == 'WV':
                if s.a.need_vm(it.tag) is None: st.q.popleft(); continue
                return it if s._age(s.a.vm, s.vm_n, it.tag) >= it.age else None
            return it
        return None
    def pick(s, kinds):
        for st in list(s.streams):
            it = s.head(st)
            if it is not None and it.k in kinds: return st
        return None
    def pop(s, st):
        it = st.q.popleft(); st.last = s.n
        if it.k == 'WL': s.wait(lg=it.tag)
        elif it.k == 'WV': s.wait(vm=it.tag)
        elif it.k == 'F': it.fn()
        elif it.k == 'B':
            for t in it.txt.split('\n'): s.E(t, k='S')
            s.a.label(it.tag)
        else:
            s.E(it.txt, it.tag)
            if it.txt == 's_barrier': s._bar()
        while st.q and st.q[0].k == 'F' and st.q[0].cond is None: st.q.popleft().fn()
    def flush(s, pred=lambda st: True, why=''):
        s.forcing = True
        nl = sum(len(st.q) for st in s.streams if pred(st))
        if nl: s.log.append((s.n, f'flush {why}: {nl} items'))
        while True:
            live = [st for st in s.streams if st.q and pred(st)]
            if not live: break
            prog = False
            for st in live:
                it = st.q[0]
                if it.cond and not it.cond(): continue
                if it.k == 'B': s.E('s_nop 1')
                s.pop(st); s.forced += 1; prog = True
            assert prog, (why, [(st.name, st.q[0].txt, st.q[0].k) for st in live])
        s.forcing = False
        s.streams = [st for st in s.streams if st.q]
    def _bar(s):
        for f in s.on_barrier: f()
    def need_wait(s, tags):
        return tags and s.a.need_lg(tags) is not None
    def lg_wait(s, tags, vm=None, drain=False):
        a = s.a
        idx = -1
        if tags: idx = a._last(a.lg, tags)
        old = [i for i in range(a.lg_done, len(a.lg)) if s.n - s.lg_n[i] >= s.LGAGE]
        if old: idx = max(idx, old[-1])
        if drain: idx = len(a.lg) - 1
        parts = []
        if vm:
            n = a.need_vm(vm)
            if n is not None:
                n = min(n, 63); parts.append(f'vmcnt({n})'); a.vm_done = len(a.vm) - n
        if idx >= a.lg_done:
            n = min(len(a.lg) - 1 - idx, 15); parts.append(f'lgkmcnt({n})'); a.lg_done = len(a.lg) - n
        if parts: s.E('s_waitcnt ' + ' '.join(parts))
    def read_ok(s):
        if not s.reads: return False
        r = s.reads[0]
        return r['free'] <= s.n and (not r.get('cond') or r['cond']())
    def emit_read(s):
        r = s.reads.popleft()
        if r['k'] == 'R': s.E(r['txt'], r['tag'])
        return r
    def force_reads(s, tags):
        while any(r['k'] == 'R' and r['tag'] in tags for r in s.reads):
            r = s.reads[0]
            if r['k'] != 'R': s.do_barrier(None)
            else: s.emit_read()
            s.forced += 1
    def do_barrier(s, nxt):
        r = s.reads.popleft()
        for t in r['vm'] + r.get('iss', []):
            for st in s.streams:
                while any(it.tag == t and it.k == 'V' for it in st.q):
                    it = st.q[0]
                    if it.k == 'F' and s.lock is not None:
                        for o in s.streams:
                            if o is not st and o.name.startswith('dma'):
                                while s.lock is not None and o.q and o.q[0].k != 'F': s.pop(o); s.forced += 1
                    assert not (it.cond and not it.cond()), ('barrier needs', t, st.name, it.txt)
                    s.pop(st); s.forced += 1; s.log.append((s.n, f'forced dma for {t}'))
        s.lg_wait(nxt if s.need_wait(nxt) else None, vm=r['vm'] or None, drain=r.get('drain', False))
        if r['k'] == 'B':
            s.E('s_barrier'); s._bar()
        if s.P and r.get('name'): s.P.stamp(r['name'])
        if r.get('fn'): r['fn']()
    def gap(s, nxt, urgent=10):
        if nxt: s.force_reads(nxt)
        nw = s.need_wait(nxt)
        rd = s.read_ok()
        if rd and s.reads[0]['k'] != 'R':
            s.do_barrier(nxt)
            if len(s.gapk) <= 2:
                st = s.pick('P')
                if st: s.pop(st)
            return
        if not nw and not s.gapk:
            st = s.pick('V')
            if st and not (rd and s.reads[0]['use'] - s.n <= urgent):
                s.pop(st); return
        if nw: s.lg_wait(nxt)
        elif not s.gapk:
            st = s.pick(('S', 'WL', 'WV', 'B'))
            if st: s.pop(st)
        if rd:
            s.emit_read()
            st = s.pick('P') or (s.pick('T') if s.n >= s.dt_from else None)
            if st: s.pop(st)
            return
        st = s.pick(('T', 'D', 'W'))
        if st:
            k = st.q[0].k; s.pop(st)
            if k == 'D':
                st = s.pick('P')
                if st: s.pop(st)
            return
        st = s.pick('P')
        if st:
            s.pop(st)
            st = s.pick(('P', 'S', 'WL', 'WV'))
            if st: s.pop(st)
            return
        for _ in range(2):
            st = s.pick(('S', 'WL', 'WV', 'B'))
            if st: s.pop(st)
    def run(s, M):
        for i, m in enumerate(M):
            if m.get('pre'): m['pre']()
            if m.get('lg'):
                s.force_reads(m['lg'])
                if s.need_wait(m['lg']): s.lg_wait(m['lg'])
            s.close_gap()
            s.n += 1
            n0 = s.a.nops
            s.a.I(m['txt'])
            if s.a.nops != n0: s.log.append((s.n, 'nop before mfma ' + m['txt'])); s.est += 4
            if m.get('post'): m['post']()
            s.gap(M[i + 1].get('lg') if i + 1 < len(M) else None)
        s.streams = [st for st in s.streams if st.q]
    def report(s, title):
        print(f'[{title}] mfma {s.n+1} est {s.est} ideal {16*(s.n+1)} forced {s.forced} left {[(st.name, len(st.q)) for st in s.streams if st.q]}')
        print('   ', sorted(s.hist.items(), key=lambda x: -x[1])[:24])
```

```python
import sys
from asmlib import *
from lay import *
from prof import Prof
import ph1
NAME = 'gated_mix__ssm_conv_s5__swiglu_ffn__prompt_kernel'
HDR = open('gated_mix__ssm_conv_s5__swiglu_ffn__prompt.s.ref').read().split('; Override launch')[0]

def fp_addr(a, sg, d, t):
    I = a.I
    I(f's_mul_i32 s{d}, s{sTH}, 24')
    I(f's_add_u32 s{d}, s{d}, s{sIDX}')
    I(f's_lshl_b32 s{d}, s{d}, 2')
    I(f's_xor_b32 s{t}, s{sFQ}, {sg}')
    I(f's_add_u32 s{d}, s{d}, s{t}')
    I(f's_lshl_b32 s{d}, s{d}, 2')
    I(f's_add_u32 s{d}, s{d}, s{sW}')
    I(f's_lshl_b32 s{d}, s{d}, 6')
    I(f's_add_u32 s{d}, s{d}, {FP_OFF + 4*(sg-1)}')
def fa_addr(a, d, t):
    I = a.I
    I(f's_lshl_b32 s{d}, s{sTH}, 3')
    I(f's_add_u32 s{d}, s{d}, s{sIDX}')
    I(f's_sub_u32 s{d}, s{d}, 24')
    I(f's_lshl_b32 s{d}, s{d}, 2')
    I(f's_add_u32 s{d}, s{d}, s{sW}')
    I(f's_lshl_b32 s{d}, s{d}, 5')
    I(f's_add_u32 s{d}, s{d}, s{sFQ}')
    I(f's_lshl_b32 s{d}, s{d}, 2')
    I(f's_add_u32 s{d}, s{d}, {FA_OFF}')

def build(path, prof, cfg, name=NAME, as_list=False, verbose=False):
    cfg = dict(cfg, fp_addr=fp_addr, fa_addr=fa_addr)
    a = Asm(); I = a.I
    a.raw(f'.p2align 8\n.globl {name}\n.type {name},@function\n{name}:')
    P0 = Prof(a, prof, ph1.vPROF)
    ph1.gen_entry(a, name, P0, cfg)
    tails = []
    names = {}
    for B in (False, True):
        P = P0.fork()
        if cfg.get('p1only'):
            sch, lds, marks = ph1.gen_phase1(a, name, B, P, cfg, tails)
            sch.flush(why='end')
        else:
            import ph2a, ph2b
            sch = (ph2b if B else ph2a).gen(a, name, P, cfg, tails)
        P.dump(2, 50)
        I('s_endpgm')
        names['B' if B else 'A'] = P.names
        if verbose:
            for l in sch.log: print('   ', l)
    for t in tails: a.raw(t)
    a.label(f'{name}_done')
    I('s_endpgm')
    launch = f'; @launch {"kernel=" + name + " " if as_list else ""}grid=(256,1,1) block=(256,1,1) lds=163840'
    s = HDR + launch + '\n.amdgcn_target "amdgcn-amd-amdhsa--gfx950"\n.text\n' + a.text() + '\n.section .rodata,"a"\n' + kd(name, 512, 256) + '\n'
    open(path, 'w').write(s)
    print(path, 'lines', len(a.lines), 'nops', a.nops, 'bytes', len(s))
    return names

if __name__ == '__main__':
    import json
    cfg = eval(sys.argv[1]) if len(sys.argv) > 1 else {}
    names = build('f1.s', 1, cfg, name='f_kernel', as_list=True, verbose='-v' in sys.argv)
    json.dump(names, open('f1.json', 'w'))
    build('f0.s', 0, cfg)
```

```python
from asmlib import *
from lay import *
from sched import *

XA, BI, XI = 65536, 131072, 147456
MISC = 147456; EA = MISC; TA = MISC
FR, NF, XV, ACC = 40, 6, 64, 96
SET = lambda i: ACC + 32 * i
vPROF = 1
vWD, vRA0, vRA1, vST, vL0, vEL = 2, 3, 4, 5, 6, 7
LAMS, CFS, LAMX, CFX = 8, 10, 12, 14
TM = 16
XPK = 22
vXD = [30, 31, 32, 33]; vXR = [34, 35]; vBD, vXD2 = 36, 37; vBR = [38, 39]
vONE = vRA1
vTD, vTR = 30, [31, 32]
SCR = SET(2)
S_L16, S_L64, S_L16Q, S_L256, S_L512Q, S_L16G, S_PG = [SCR + 2 * i for i in range(7)]
X_L16, X_L64, X_L16Q = SCR + 14, SCR + 16, SCR + 18
LD, SQ, vEA, vER, vEP, vGL = SCR + 20, SCR + 26, SCR + 28, SCR + 29, SCR + 30, SCR + 31
STMP = TM
sKX, sT0, sT1 = 49, 50, 51
RDB = 52
sM1K, sH, sNL = 74, 75, 56
sMX = 57
sHT, sHFS, sHFX, sFH, sFS, sFX, sG = 58, 59, 60, 61, 62, 63, 64
sMASK = 82
vPF = 39; DUMMY = MISC + 12288; sPF = 86; vDUM = 38
sCMP = 76

def xreg(s, kp, t):
    i = 32 * s + 16 * kp + 4 * t
    return f'a[{i}:{i+3}]' if s < 8 else f'v[{XV + i - 256}:{XV + i - 253}]'

def cmac(d, l, x):
    return [f'v_fmac_f32 v{d}, v{l}, v{x}', f'v_fmac_f32 v{d+1}, v{l}, v{x+1}',
            f'v_fma_f32 v{d}, -v{l+1}, v{x+1}, v{d}', f'v_fmac_f32 v{d+1}, v{l+1}, v{x}']
def cmul(d, l, x):
    return [f'v_mul_f32 v{d}, v{l}, v{x}', f'v_mul_f32 v{d+1}, v{l}, v{x+1}',
            f'v_fma_f32 v{d}, -v{l+1}, v{x+1}, v{d}', f'v_fmac_f32 v{d+1}, v{l+1}, v{x}']

RAWS = [SET(0), SET(0) + 1, SET(0) + 2]; RAWX = [SET(0) + 3, SET(0) + 4, SET(0) + 5]
PT = [SET(0) + 8 + i for i in range(8)]
FOA = [4 * x for x in [0, 12, 32, 48, 64]]; FOB = [4 * x for x in [12, 16, 32, 48, 64]]
def next_kx():
    return [f's_add_u32 s{sKX}, s{sKX}, 128', f's_cmp_lg_u32 s{sKX}, 1152\ns_cselect_b32 s{sKX}, s{sKX}, 0']
def dma_x(s):
    L = [f's_add_u32 m0, s{sMX}, {XA + (s & 1)*8192}']
    L += [It(f'buffer_load_dwordx4 v{vXD[p]}, {R4(RX)}, s{sKX} offen offset:{1024*p} lds', ('X', s)) for p in range(4)]
    L += [f's_add_u32 m0, s{sMX}, {XA + (s & 1)*8192 + 4096}', f's_add_u32 s{sT1}, s{sKX}, 9216']
    L += [It(f'buffer_load_dwordx4 v{vXD[p]}, {R4(RX)}, s{sT1} offen offset:{1024*p} lds', ('X', s)) for p in range(4)]
    return L
def dma_b(s):
    return [f's_add_u32 m0, s{sM1K}, {BI + (s & 3)*4096}', It(f'buffer_load_dwordx4 v{vBD}, {R4(RBM)}, s{sKX} offen lds', ('B', s))]
def dma_xi(s):
    return [f's_add_u32 m0, s{sM1K}, {XI + (s & 3)*4096}', It(f'buffer_load_dwordx4 v{vXD2}, {R4(RXS)}, s{sKX} offen lds', ('B', s))]

def gen_entry(a, name, P, cfg):
    I = a.I
    drop = {False: set(), True: set()}
    nb = [0]
    def only(B, fn):
        nb[0] += 1
        I(f's_cmp_ge_u32 s{sJJ}, 6')
        I(f's_cbranch_scc{0 if B else 1} {name}_sk{nb[0]}')
        k = len(a.vm); fn(); drop[not B].update(range(k, len(a.vm)))
        a.label(f'{name}_sk{nb[0]}')
    def emit(L):
        for t in L:
            if isinstance(t, str): I(t)
            else: I(t.txt, t.tag)
    I('s_cmp_ge_u32 s2, 256')
    I(f's_cbranch_scc1 {name}_done')
    I('s_load_dwordx16 s[56:71], s[0:1], 0')
    I('s_load_dwordx16 s[72:87], s[0:1], 64')
    I('s_load_dwordx2 s[88:89], s[0:1], 128')
    P.stamp('entry')
    I('v_lshrrev_b32 v2, 6, v0')
    I(f's_lshr_b32 s{sT0}, s2, 3')
    I(f's_lshl_b32 s{sT0}, s{sT0}, 12')
    I('v_and_b32 v11, 7, v0')
    I(f'v_lshl_add_u32 v16, v11, 7, s{sT0}')
    I('v_lshl_add_u32 v16, v2, 10, v16')
    I(f'v_min_u32 v16, {name}_done-{name}, v16')
    I(f's_getpc_b64 s[{RWG}:{RWG+1}]')
    a.label(f'{name}_pc')
    I(f's_sub_u32 s{RWG}, s{RWG}, {name}_pc-{name}')
    I(f's_subb_u32 s{RWG+1}, s{RWG+1}, 0')
    I(f'global_load_dword v{PT[7]}, v16, s[{RWG}:{RWG+1}]', 'CP')
    I('v_and_b32 v0, 63, v0')
    I(f'v_readfirstlane_b32 s{sW}, v2')
    I(f's_and_b32 s{sTH}, s2, 1')
    I(f's_bfe_u32 s{sFQ}, s2, 0x20001')
    I(f's_add_u32 s{sIDX}, s2, 192')
    I(f's_bfe_u32 s{sIDX}, s{sIDX}, 0x50003')
    I(f's_lshr_b32 s{sJJ}, s{sIDX}, 2')
    I(f's_and_b32 s{sT0}, s{sIDX}, 3')
    I(f's_lshl_b32 s{sC}, s{sTH}, 2')
    I(f's_add_u32 s{sC}, s{sC}, s{sT0}')
    I(f's_lshl_b32 s{sG64}, s{sC}, 2')
    I(f's_add_u32 s{sG64}, s{sG64}, s{sW}')
    rot = cfg.get('rot', 3)
    if rot == 1:
        I(f's_lshl_b32 s{sKX}, s{sT0}, 1')
        I(f's_add_u32 s{sKX}, s{sKX}, s{sJJ}')
        I(f's_add_u32 s{sKX}, s{sKX}, s{sTH}')
        I(f's_sub_u32 s{sT0}, s{sKX}, 9')
        I(f's_cmp_ge_u32 s{sKX}, 9')
        I(f's_cselect_b32 s{sKX}, s{sT0}, s{sKX}')
    elif rot == 2: I(f's_mov_b32 s{sKX}, s{sJJ}')
    elif rot in (3, 4):
        I(f's_add_u32 s{sT0}, s{sT0}, s{sJJ}')
        I(f's_mul_i32 s{sKX}, s{sT0}, 11')
        I(f's_lshr_b32 s{sKX}, s{sKX}, 5')
        I(f's_mul_i32 s{sKX}, s{sKX}, 3')
        I(f's_sub_u32 s{sKX}, s{sT0}, s{sKX}')
        I(f's_mul_i32 s{sKX}, s{sKX}, 3')
        if rot == 3:
            I(f's_cmp_eq_u32 s{sFQ}, 3')
            I(f's_cselect_b32 s{sT0}, 0, s{sFQ}')
            I(f's_add_u32 s{sKX}, s{sKX}, s{sT0}')
    elif rot == 5:
        I(f's_add_u32 s{sT0}, s{sT0}, s{sJJ}')
        I(f's_and_b32 s{sKX}, s{sT0}, 3')
        I(f's_lshl_b32 s{sKX}, s{sKX}, 1')
        I(f's_and_b32 s{sT0}, s{sFQ}, 1')
        I(f's_add_u32 s{sKX}, s{sKX}, s{sT0}')
    elif rot == 6:
        I(f's_add_u32 s{sT0}, s{sT0}, s{sJJ}')
        I(f's_and_b32 s{sKX}, s{sT0}, 1')
        I(f's_mul_i32 s{sKX}, s{sKX}, 5')
        I(f's_add_u32 s{sKX}, s{sKX}, s{sFQ}')
    else: I(f's_mov_b32 s{sKX}, 0')
    I(f's_mul_i32 s{sKW}, s{sKX}, {64*9216}')
    I(f's_lshl_b32 s{sKX}, s{sKX}, 7')
    I('v_and_b32 v15, 15, v0')
    I(f's_mul_i32 s41, s{sFQ}, 9')
    I(f's_add_u32 s42, s41, s41')
    I(f's_add_u32 s41, s41, s{sJJ}')
    I(f's_lshl_b32 s{sT1}, s41, 4')
    I(f'v_add_lshl_u32 v17, v15, s{sT1}, 1')
    I(f's_add_u32 s42, s42, s{sJJ}')
    I(f's_add_u32 s42, s42, 10')
    I(f's_lshl_b32 s42, s42, 3')
    I(f'v_add_lshl_u32 v18, v11, s42, 1')
    I('v_lshrrev_b32 v10, 3, v0')
    I('v_lshrrev_b32 v12, 4, v0')
    I('v_xor_b32 v11, v11, v12')
    I('v_lshlrev_b32 v11, 4, v11')
    I('v_lshrrev_b32 v13, 5, v0')
    I('v_and_b32 v14, 3, v10')
    I('v_lshl_add_u32 v13, v13, 4, v14')
    I(f's_lshl_b32 s{sT0}, s{sG64}, 6')
    I(f'v_add_u32 v13, s{sT0}, v13')
    I('v_mul_u32_u24 v13, 1152, v13')
    I(f'v_add_u32 v{vXD[0]}, v13, v11')
    I(f'v_xor_b32 v13, 64, v{vXD[0]}')
    I(f'v_add_u32 v{vXD[1]}, {32*1152 - 1024}, v13')
    I(f'v_add_u32 v{vXD[2]}, {4608 - 2048}, v{vXD[0]}')
    I(f'v_add_u32 v{vXD[3]}, {32*1152 + 4608 - 3072}, v13')
    I(f's_and_b32 s{sT0}, s{sW}, 1')
    I(f's_lshl_b32 s43, s{sT0}, 6')
    I(f'v_xor_b32 v11, s43, v11')
    I(f's_lshl_b32 s{sT0}, s{sT0}, 3')
    I(f's_add_u32 s{sT1}, s{sT1}, s{sT0}')
    I(f'v_add_u32 v13, s{sT1}, v10')
    I('v_mul_u32_u24 v13, 1152, v13')
    I(f'v_add_u32 v{vBD}, v13, v11')
    I(f'v_add_u32 v13, s42, v10')
    I(f's_cmp_eq_u32 s{sW}, 1')
    I(f's_cselect_b32 s{sT1}, 0, 1152')
    I(f's_mov_b32 s{RBM+2}, {576*1152}')
    I(f's_cselect_b32 s{RXS+2}, 1152, s{RBM+2}')
    I(f'v_mul_u32_u24 v13, s{sT1}, v13')
    I(f'v_add_u32 v{vXD2}, v13, v11')
    I(f's_mov_b32 s{RXS+3}, 0x20000')
    I(f's_mov_b32 s{RBM+3}, 0x20000')
    I(f's_mov_b32 s{RX+2}, {2048*1152}')
    I(f's_mov_b32 s{RX+3}, 0x20000')
    tRS = 44
    I(f's_sub_u32 s{tRS}, s2, 64')
    I(f's_cmp_lt_u32 s{tRS}, {E_SZ // 2048}')
    I(f's_cselect_b32 s{sT0}, -1, 0')
    for d in range(4): I(f'v_mov_b32 v{20+d}, s{sT0}')
    I(f's_lshl_b32 s{sT0}, s{sW}, 8')
    I(f's_or_b32 s{sT0}, s{sT0}, s{tRS}')
    I(f's_cmp_lt_u32 s{sT0}, {NRS}')
    I(f's_cselect_b32 s{tRS+1}, 0, {OOB}')
    I(f's_cselect_b32 s{tRS}, s{tRS}, 0')
    I(f'v_lshlrev_b32 v{vST}, 4, v0')
    I(f'v_or_b32 v16, s{tRS+1}, v{vST}')
    I(f's_lshl_b32 s{tRS+2}, s{tRS}, 11')
    I(f's_add_u32 s{tRS+2}, s{tRS+2}, {E_OFF}')
    I(f's_mov_b32 s{RWS+2}, {WS_USED}')
    I(f's_mov_b32 s{RWS+3}, 0x20000')
    P.stamp('pre')
    I('s_waitcnt lgkmcnt(0)')
    P.stamp('karg')
    I(f's_mov_b32 s{RWS}, s{S_WS}')
    I(f's_and_b32 s{RWS+1}, s{S_WS+1}, 0xffff')
    for o in (0, 1024): I(f'buffer_store_dwordx4 v[20:23], v16, {R4(RWS)}, s{tRS+2} offen offset:{o} sc1', 'RS')
    for i, sp in enumerate((S_LRE, S_LIM, S_LDT)):
        I(f'global_load_ushort v{RAWS[i]}, v17, s[{sp}:{sp+1}]', 'PL')
        I(f'global_load_ushort v{RAWX[i]}, v18, s[{sp}:{sp+1}]', 'PL')
    I(f's_cmp_lt_u32 s{sW}, 2')
    I(f's_cselect_b32 s{RBM}, s{S_BRE}, s{S_BIM}')
    I(f's_cselect_b32 s{RBM+1}, s{S_BRE+1}, s{S_BIM+1}')
    I(f's_and_b32 s{RBM+1}, s{RBM+1}, 0xffff')
    I(f's_lshl_b32 s{sM1K}, s{sW}, 10')
    emit(dma_b(0))
    I(f's_cmp_eq_u32 s{sW}, 1')
    I(f's_cselect_b32 s{RXS}, s{S_GW}, s{RBM}')
    I(f's_cselect_b32 s{RXS+1}, s{S_GW+1}, s{RBM+1}')
    I(f's_and_b32 s{RXS+1}, s{RXS+1}, 0xffff')
    only(True, lambda: emit(dma_xi(0)))
    I(f's_mov_b32 s{RX}, s{S_X}')
    I(f's_and_b32 s{RX+1}, s{S_X+1}, 0xffff')
    I(f's_lshl_b32 s{sMX}, s{sW}, 14')
    emit(dma_x(0))
    P.stamp('issued')
    I(f's_mul_i32 s{sHFS}, s{sG64}, 36')
    I(f's_add_u32 s{sHFS}, s{sHFS}, s41')
    I(f's_sub_u32 s{sHFX}, s{sHFS}, s{sJJ}')
    I(f's_add_u32 s{sHFX}, s{sHFX}, 8')
    I(f's_lshl_b32 s{sHFS}, s{sHFS}, 12')
    I(f's_lshl_b32 s{sHFX}, s{sHFX}, 12')
    I(f's_add_u32 s{sHFS}, s{sHFS}, {HF_OFF}')
    I(f's_add_u32 s{sHFX}, s{sHFX}, {HF_OFF}')
    I(f's_lshl_b32 s{sG}, s{sG64}, 8')
    I(f's_add_u32 s{sG}, s{sG}, {G_OFF}')
    tES, tEX = 47, 48
    I(f's_lshl_b32 s{tES}, s{sFQ}, 3')
    I(f's_add_u32 s{tES}, s{tES}, s{sJJ}')
    I(f's_lshl_b32 s{sFS}, s{sG64}, 6')
    I(f's_add_u32 s{sFS}, s{sFS}, {FS_OFF // 4}')
    I(f's_lshl_b32 s{tEX}, s{sFQ}, 1')
    I(f's_add_u32 s{tEX}, s{tEX}, s{sJJ}')
    I(f's_add_u32 s{tEX}, s{tEX}, 26')
    I(f's_add_u32 s{sFX}, s{sFS}, s{tEX}')
    I(f's_add_u32 s{sFS}, s{sFS}, s{tES}')
    I(f's_lshl_b32 s{sFS}, s{sFS}, 2')
    I(f's_lshl_b32 s{sFX}, s{sFX}, 2')
    I(f's_cmp_eq_u32 s{tES}, 6')
    I(f's_cselect_b32 s{sT0}, 8, 99')
    I(f'v_cmp_eq_u32 vcc, s{sT0}, v15')
    I('v_lshlrev_b32 v13, 6, v12')
    I(f'v_mov_b32 v16, {OOB}')
    I(f'v_cndmask_b32 v{vGL}, v16, v13, vcc')
    for r, t in ((RE0, tES), (RE1, tEX)):
        I(f's_lshl_b32 s{t}, s{t}, 10')
        I(f's_add_u32 s{t}, s{t}, {E_OFF}')
        I(f's_add_u32 s{r}, s{S_WS}, s{t}')
        I(f's_addc_u32 s{r+1}, s{S_WS+1}, 0')
        I(f's_and_b32 s{r+1}, s{r+1}, 0xffff')
        I(f's_mov_b32 s{r+2}, 1024')
        I(f's_mov_b32 s{r+3}, 0x20000')
    I(f's_lshr_b32 s{sFH}, s{sG64}, 1')
    I(f's_lshl_b32 s{sFH}, s{sFH}, 2')
    I(f's_add_u32 s{sFH}, s{sFH}, s{sFQ}')
    I(f's_lshl_b32 s{sFH}, s{sFH}, 6')
    I(f's_add_u32 s{sFH}, s{sFH}, s{sJJ}')
    I(f's_lshl_b32 s{sFH}, s{sFH}, 1')
    I(f's_and_b32 s{sT0}, s{sW}, 1')
    I(f's_add_u32 s{sFH}, s{sFH}, s{sT0}')
    I(f's_lshl_b32 s{sFH}, s{sFH}, 2')
    I(f's_add_u32 s{sFH}, s{sFH}, {FH_OFF}')
    I(f's_sub_u32 s{sT0}, 7, s{sC}')
    I(f's_lshl_b32 s{sT0}, s{sT0}, 7')
    I('v_lshlrev_b32 v13, 8, v12')
    I('v_lshl_add_u32 v13, v15, 3, v13')
    I(f'v_add_u32 v{vEL}, s{sT0}, v13')
    I('v_cmp_eq_u32 vcc, 0, v0')
    I(f'v_subrev_u32 v13, 768, v{vEL}')
    I(f'v_cndmask_b32 v{vL0}, v16, v0, vcc')
    I(f's_cmp_eq_u32 s{sW}, 3')
    I(f's_cselect_b32 vcc_hi, 0xffff0000, 0')
    I(f's_mov_b32 vcc_lo, 0')
    I(f'v_cndmask_b32 v{vEP}, v16, v13, vcc')
    I(f's_lshl_b32 s{tRS}, s{tRS}, 2')
    I(f's_or_b32 s{tRS}, s{tRS}, s{tRS+1}')
    I(f'v_or_b32 v{SQ}, s{tRS}, v{vL0}')
    I('v_lshrrev_b32 v16, 5, v0')
    I('v_lshl_add_u32 v16, v16, 3, v14')
    I(f's_lshl_b32 s{sT0}, s{sW}, 4')
    I(f'v_add_u32 v16, s{sT0}, v16')
    I('v_mul_u32_u24 v16, 9216, v16')
    I(f'v_and_b32 v17, 0x70, v{vST}')
    I('v_lshlrev_b32 v18, 5, v12')
    I('v_xor_b32 v17, v17, v18')
    I(f's_lshl_b32 s{sT0}, s41, 8')
    I(f'v_add3_u32 v{vWD}, v16, v17, s{sT0}')
    I('v_and_b32 v16, 32, v0')
    I('v_lshlrev_b32 v16, 6, v16')
    I('v_bfe_u32 v17, v0, 2, 3')
    I('v_lshl_add_u32 v16, v17, 7, v16')
    I('v_lshl_add_u32 v16, v14, 5, v16')
    I('v_and_b32 v17, 3, v0')
    I(f'v_lshl_add_u32 v{vRA0}, v17, 3, v16')
    I(f'v_xor_b32 v{vRA1}, 32, v{vRA0}')
    srd(a, RWG, S_WG, 576 * 9216)
    srd(a, RWU, S_WU, 576 * 9216)
    srd(a, RDB, S_DBG, 256)
    for s in range(1, 9):
        I(f's_add_u32 s{sKW+s}, s{sKW+s-1}, {64*9216}')
        I(f's_cmp_lg_u32 s{sKW+s}, {576*9216}')
        I(f's_cselect_b32 s{sKW+s}, s{sKW+s}, 0')
    I(f's_mul_i32 s{sT0}, s{sG64}, 144')
    I(f's_mul_i32 s{sT1}, s{sFQ}, 36')
    I(f's_add_u32 s{sT0}, s{sT0}, s{sT1}')
    I(f's_lshl_b32 s{sT0}, s{sT0}, 12')
    I(f's_lshl_b32 s{sH}, s{sJJ}, 14')
    I(f's_add_u32 s{sH}, s{sH}, s{sT0}')
    I(f's_lshl_b32 s{sHT}, s{sJJ}, 11')
    I(f's_add_u32 s{sHT}, s{sHT}, s{sT0}')
    I(f's_add_u32 s{sHT}, s{sHT}, {32*4096}')
    I('v_lshrrev_b32 v13, 1, v15')
    I('v_xor_b32 v13, v13, v12')
    I('v_lshlrev_b32 v13, 4, v13')
    I('v_lshl_add_u32 v13, v15, 7, v13')
    I(f's_add_u32 s{sT0}, s{sMX}, {XA}')
    I(f'v_add_u32 v{vXR[0]}, s{sT0}, v13')
    I(f'v_xor_b32 v{vXR[1]}, 64, v{vXR[0]}')
    I(f'v_add_u32 v{vBR[0]}, {BI}, v13')
    I(f'v_xor_b32 v{vBR[1]}, 64, v{vBR[0]}')
    I(f's_add_u32 s{sT0}, s{sM1K}, {EA}')
    I(f'v_lshl_add_u32 v{vEA}, v0, 3, s{sT0}')
    I(f'v_or_b32 v{vER}, 384, v{vEA}')
    I(f's_mov_b32 s{sNL}, 0xbfb8aa3b')
    I('v_cvt_f32_u32 v13, v12')
    I(f'v_mul_f32 v{PT[4]}, 0x44000000, v13')
    I(f'v_mul_f32 v{PT[6]}, 0x41800000, v13')
    I(f's_lshl_b32 s{sT0}, s{sW}, 2')
    I(f'v_add_lshl_u32 v13, v12, s{sT0}, 4')
    I(f'v_cvt_f32_u32 v{PT[5]}, v13')
    P.stamp('setup')
    emit(next_kx()); emit(dma_b(1))
    only(True, lambda: emit(dma_xi(1)))
    emit(dma_x(1)); emit(next_kx())
    I(f's_cmp_ge_u32 s{sJJ}, 6')
    I(f's_cbranch_scc1 {name}_B')
    cfg['vm0'] = {B: [t for i, t in enumerate(a.vm) if i not in drop[B]] for B in (False, True)}

def params(raw, lam, cf, pw, t):
    L = []; I = L.append
    LR, LI, DT = raw
    A, PH, T2, T3 = t
    I(f'v_lshlrev_b32 v{LR}, 16, v{LR}')
    I(f'v_lshlrev_b32 v{LI}, 16, v{LI}')
    I(f'v_lshlrev_b32 v{DT}, 16, v{DT}')
    I(f'v_mul_f32 v{DT}, 0x3fb8aa3b, v{DT}')
    I(f'v_exp_f32 v{DT}, v{DT}')
    I(f'v_cvt_pk_bf16_f32 v{DT}, v{DT}, v{DT}')
    I(f'v_lshlrev_b32 v{DT}, 16, v{DT}')
    I(f'v_mul_f32 v{A}, v{DT}, v{LR}')
    I(f'v_mul_f32 v{PH}, v{DT}, v{LI}')
    I(f'v_mul_f32 v{A}, 0x3fb8aa3b, v{A}')
    I(f'v_mul_f32 v{PH}, 0.15915494, v{PH}')
    I(f'v_rndne_f32 v{T2}, v{PH}')
    I(f'v_sub_f32 v{PH}, v{PH}, v{T2}')
    for mul, d in [('1.0', lam)] + pw:
        I(f'v_mul_f32 v{T2}, {mul}, v{A}')
        I(f'v_mul_f32 v{T3}, {mul}, v{PH}')
        I(f'v_exp_f32 v{T2}, v{T2}')
        I(f'v_rndne_f32 v{d}, v{T3}')
        I(f'v_sub_f32 v{T3}, v{T3}, v{d}')
        I(f'v_cos_f32 v{d}, v{T3}')
        I(f'v_sin_f32 v{d+1}, v{T3}')
        I(f'v_mul_f32 v{d}, v{T2}, v{d}')
        I(f'v_mul_f32 v{d+1}, v{T2}, v{d+1}')
    I(f'v_add_f32 v{T2}, -1.0, v{lam}')
    I(f'v_mul_f32 v{T3}, v{LR}, v{LR}')
    I(f'v_fmac_f32 v{T3}, v{LI}, v{LI}')
    I(f'v_rcp_f32 v{T3}, v{T3}')
    I(f'v_mul_f32 v{cf}, v{T2}, v{LR}')
    I(f'v_fmac_f32 v{cf}, v{lam+1}, v{LI}')
    I(f'v_mul_f32 v{cf+1}, v{lam+1}, v{LR}')
    I(f'v_fma_f32 v{cf+1}, -v{T2}, v{LI}, v{cf+1}')
    I(f'v_add_f32 v{T3}, v{T3}, v{T3}')
    I(f'v_mul_f32 v{cf}, v{cf}, v{T3}')
    I(f'v_mul_f32 v{cf+1}, v{cf+1}, v{T3}')
    return L

class LdsPlan:
    def __init__(s, sch):
        s.sch = sch; s.al = []; s.last = {}; s.rel = set(); sch.on_barrier.append(s.bar)
    def alloc(s, key, addr, size):
        prev = [k for k, ad, sz in s.al if ad < addr + size and addr < ad + sz]
        s.al.append((key, addr, size))
        return lambda: all(k in s.rel for k in prev)
    def reader(s, key, tag): s.last[key] = tag
    def bar(s):
        a = s.sch.a
        for k, tag in s.last.items():
            if k not in s.rel and tag in a.lg and a.lg_is_done(tag) and not any(r['k'] == 'R' and r['tag'] == tag for r in s.sch.reads):
                s.rel.add(k)

def gen_phase1(a, name, B, P, cfg, tails, late=None):
    I = a.I
    nm = f'{name}_{"B" if B else "A"}'
    a.label(nm)
    a.hist = []; a.vm = list(cfg['vm0'][B]); a.vm_done = 0; a.lg = []; a.lg_done = 0
    FO = FOB if B else FOA
    P.stamp('cls')
    PAR = params(RAWS, LAMS, CFS, [('0x41800000', S_L16), ('0x42800000', S_L64), (f'v{PT[6]}', S_L16Q), ('0x43800000', S_L256), (f'v{PT[4]}', S_L512Q), (f'v{PT[5]}', S_L16G)], PT[:4])
    if B: PAR += params(RAWX, LAMX, CFX, [('0x41800000', X_L16), ('0x42800000', X_L64), (f'v{PT[6]}', X_L16Q), ('0x43800000', XPK), (f'v{PT[4]}', XPK + 2), (f'v{PT[5]}', XPK + 4)], PT[:4])

    sch = Sched(a, P); lds = LdsPlan(sch)
    sch.fine = cfg.get('fine', (-9, -9)); sch.LGAGE = cfg.get('lgage', 6)
    PD = cfg.get('PD', 4)
    sch.add('par', [WV('PL', 0)] + PAR, prio=25, key='par')
    xearly = cfg.get('xearlyB', 14) if B else cfg.get('xearlyA', 0)
    U = []
    SS, SX = SET(4), SET(3)
    for s in range(9):
        for kp in range(2):
            for (base, ad) in [(SS, 0)] + ([(SX, XI - BI)] if B else []):
                for ri in range(2):
                    U.append(dict(stage=('B', s), rd=[lambda b, ad=ad, s=s, kp=kp, ri=ri: f'ds_read_b128 v[{b}:{b+3}], v{vBR[kp]} offset:{ad + (s & 3)*4096 + ri*2048}'],
                                  acc=base + 16 * ri, s=s, kp=kp, swap=True, first=(s == 0 and kp == 0), last=(s == 8 and kp == 1), key=base))
    psets = ([(0, 1), (2, 4), (0, 1), (2, 4)] if B else [(0, 1), (2, 3), (0, 1), (2, 3)])
    tset = 3 if B else 4
    cur = [[0, 0], [0, 0]]
    def wunits(p, s, bb):
        n = 9 * (p >> 1) + s
        r = (vRA0, vRA1)[bb]
        adj = []
        if cur[bb][1] != (p & 1): adj.append(f'v_xor_b32 v{r}, 64, v{r}')
        if cur[bb][0] != s >> 2: adj.append(f'v_add_u32 v{r}, {hex((((s >> 2) - cur[bb][0]) << 16) & 0xffffffff)}, v{r}')
        cur[bb] = [s >> 2, p & 1]
        for kp in range(2):
            for m in range(2):
                off = (s & 3) * 16384 + m * 8192 + kp * 4096
                U.append(dict(stage=('W', n), rd=[(lambda b, t=t: t) for t in adj] + [lambda b, e=e, off=off: f'ds_read_b64_tr_b16 v[{b+2*e}:{b+2*e+1}], v{r} offset:{off + e*1024}' for e in range(2)],
                              acc=SET(psets[p][bb]) + 16 * m, s=s, kp=kp, swap=False, first=(s == 0 and kp == 0), last=(s == 8 and kp == 1), key=SET(psets[p][bb]), p=p, bb=bb, m=m))
                adj = []
    for p in range(4):
        h = cfg.get('headB', 4) if (B and p == 1) else 0
        tl = cfg.get('tail', 4) if p == 3 else 0
        for bb in range(2):
            for s in range(h): wunits(p, s, bb)
        for s in range(h, 9 - tl):
            for bb in range(2): wunits(p, s, bb)
        for bb in range(2):
            for s in range(9 - tl, 9): wunits(p, s, bb)
    TB = 0
    taddr = lambda s: 4096 * s
    for s in range(9):
        for kp in range(2):
            for m in range(2):
                off = taddr(s) + kp * 2048 + m * 1024
                U.append(dict(stage=('T', s), rd=[lambda b, e=e, off=off: f'ds_read_b64_tr_b16 v[{b+2*e}:{b+2*e+1}], v{vTR[e]} offset:{off}' for e in range(2)],
                              acc=SET(tset) + 16 * m, s=s, kp=kp, swap=False, first=(s == 0 and kp == 0), last=(s == 8 and kp == 1), key=SET(tset), p=4, bb=0, m=m))
    groups = [[('X', s), ('B', s)] for s in range(9)]
    wl = cfg.get('wl', [[n] for n in range(18)])
    groups += [[('W', n) for n in g] for g in wl]
    groups += [[('T', s) for s in g] for g in cfg.get('tl', ([0, 1, 2], [3, 4, 5], [6, 7, 8]))]
    lastu = {}
    for u, un in enumerate(U): lastu[un['stage']] = u
    relat = {u + PD + 1: st for st, u in lastu.items() if st[0] == 'W' and st[1] != 8}
    grp_of = {st: g for g in groups for st in g}
    published = set()
    first_mf = lambda u: 4 * u
    for u, un in enumerate(U):
        free = max(first_mf(u - PD), 4 * (u - NF) + 3)
        if un['stage'] not in published:
            g = grp_of[un['stage']]
            published.update(g)
            isx = g[0][0] == 'X'
            sch.reads.append(dict(k='B', vm=list(g) + (['RS'] if (g[0] == ('X', 0) and cfg.get('rs0', 1)) else []), free=(4 * u - 1 - xearly if isx else free - 1), pre=((lambda: sch.popn('par', len(PAR) // 7 + 1)) if isx and u else None), name=(f'b{g[0][0]}{g[0][1]}' if (g[0][0] != 'W' or g[0][1] % 4 == 1 or g[0][1] == 0) else None), drain=(g[0] == ('W', 0)),
                                  iss=([('X', g[0][1] + 1), ('B', g[0][1] + 1)] if isx else [])))
            if g[0][0] == 'X':
                s = g[0][1]
                for kp in range(2):
                    for t in range(4):
                        sch.reads.append(dict(k='R', txt=f'ds_read_b128 {xreg(s, kp, t)}, v{vXR[kp]} offset:{(s & 1)*8192 + t*2048}', tag=('XR', s), free=-99, use=-99))
        elif u in relat:
            sch.reads.append(dict(k='B', vm=[], free=free - 1, name=(f'r{relat[u][1]}' if relat[u][1] % 9 in (0, 4) else None)))
        buf = FR + 4 * (u % NF)
        for f in un['rd']:
            sch.reads.append(dict(k='R', txt=f(buf), tag=('F', u), free=free, use=4 * u))
        lds.reader(un['stage'], ('F', u))
    cb = {}
    for s in range(9):
        cb[s] = lds.alloc(('B', s), BI + (s & 3) * 4096, 4096)
        if B: lds.alloc(('B', s), XI + (s & 3) * 4096, 4096)
    for s in range(9): lds.reader(('X', s), ('XR', s))
    lds.alloc(('X', 8), XA, 65536)
    nstart = 4 * sum(1 for un in U if un['stage'][0] == 'B')
    def dma_w(n):
        s = n % 9
        c = lds.alloc(('W', n), s * 16384, 16384)
        L = []
        if n == 9: L.append(It(f'v_add_u32 v{vWD}, 128, v{vWD}', t0=nstart + cfg.get('w2_start', 0)))
        L.append(f's_add_u32 vcc_lo, s{sKW + s}, {4*9216 - 1024}')
        wg = 0 if n < cfg.get('wearly', 3) else cfg.get('wgap', 6) if n < 9 else cfg.get('wgap2', cfg.get('wgap', 6))
        far = lambda: sch.forcing or sch.n - sch.last_v >= wg
        for m in range(2):
            L += sch.grp([f's_lshl1_add_u32 m0, s{sM1K}, {s*16384 + m*8192}',
                          It(f'buffer_load_dwordx4 v{vWD}, {R4((RWG, RWU)[m])}, s{sKW + s} offen lds', ('W', n), cond=far),
                          It(f'buffer_load_dwordx4 v{vWD}, {R4((RWG, RWU)[m])}, vcc_lo offen offset:1024 lds', ('W', n), cond=far)], cond=c)
        return L
    D = []
    wafter = cfg.get('wafter', 8); wearly = cfg.get('wearly', 3)
    for s in range(2, 9):
        c = (lambda s=s: cb[s]() and not any(r['k'] == 'R' and r['tag'] == ('XR', s - 2) for r in sch.reads))
        D += sch.grp([WL(('XR', s - 2), 3)] + dma_b(s) + (dma_xi(s) if B else []) + dma_x(s), cond=c) + ([It(t, k='S') for t in next_kx()] if s < 8 else [])
        if s == wafter:
            for n in range(wearly): D += dma_w(n)
    D.append(It(k='F', fn=lambda: None, cond=lambda: True, t0=nstart - 12))
    for n in range(wearly, 18): D += dma_w(n)
    xdone = lambda: ('X', 8) in lds.rel
    Tset = [It(f's_bitcmp1_b32 s{sW}, 0\ns_cselect_b32 s{RXS}, s{RWU}, s{RWG}\ns_cselect_b32 s{RXS+1}, s{RWU+1}, s{RWG+1}', k='S', cond=xdone),
            f's_mov_b32 s{RXS+2}, {576*9216}', f's_mov_b32 s{RXS+3}, 0x20000',
            f'v_lshrrev_b32 v{vTD}, 1, v0', f'v_bfe_u32 v{vTR[0]}, v0, 4, 1', f'v_lshlrev_b32 v{vTR[0]}, 2, v{vTR[0]}', f'v_xor_b32 v{vTD}, v{vTD}, v{vTR[0]}',
            f's_lshr_b32 s{sKX}, s{sW}, 1', f's_lshl_b32 s{sKX}, s{sKX}, 5', f'v_add_u32 v{vTD}, s{sKX}, v{vTD}', f'v_mul_u32_u24 v{vTD}, 9216, v{vTD}',
            f'v_and_b32 v{vTR[0]}, 1, v0', f'v_lshl_add_u32 v{vTD}, v{vTR[0]}, 4, v{vTD}',
            f's_mul_i32 s{sKX}, s{sFQ}, 72', f's_add_u32 s{sKX}, s{sKX}, s{sJJ}', f's_add_u32 s{sKX}, s{sKX}, 64', f's_lshl_b32 s{sKX}, s{sKX}, 5',
            f'v_add_u32 v{vTD}, s{sKX}, v{vTD}',
            f'v_lshrrev_b32 v{vTR[1]}, 4, v0', f'v_lshlrev_b32 v{vTR[1]}, 8, v{vTR[1]}', f'v_and_b32 v{vTR[0]}, 31, v0', f'v_lshl_add_u32 v{vTR[0]}, v{vTR[0]}, 3, v{vTR[1]}',
            f'v_xor_b32 v{vTR[1]}, 128, v{vTR[0]}']
    tready = {}
    tsrd = {}
    sch.add('tset', Tset[:3] + [FN(lambda: tsrd.update(ok=1)), FN(lambda: None, cond=lambda: 'tv' in sch.lin)] + Tset[3:] + [FN(lambda: tready.update(ok=1))], prio=cfg.get('tset_prio', 49))
    DT = []
    tstart = 0
    for s in range(9):
        c = lds.alloc(('T', s), TB + taddr(s), 4096)
        DT += sch.grp([f's_add_u32 m0, s{sM1K}, {TB + taddr(s)}', It(f'buffer_load_dwordx4 v{vTD}, {R4(RXS)}, s{sKW + s} offen lds', ('T', s))],
                      cond=(lambda c=c: c() and tready), t0=tstart, gapd=cfg.get('tgap', 20))
    sch.add('dma', D, prio=10)
    sch.add('dmaT', DT, prio=11)

    st = {}
    def chk_rs():
        if a.need_vm('RS') is None: st['rs'] = 1
    sch.on_barrier.append(chk_rs)
    def slow(label, loads, test, cmpreg):
        L = [f'{label}_s:', f's_mov_b32 s{sT0}, 0', f'{label}_l:', 's_sleep 1'] + loads + ['s_waitcnt vmcnt(0)'] + test + \
            ['s_nop 1', f's_cmp_eq_u64 s[{cmpreg}:{cmpreg+1}], 0', f's_cbranch_scc1 {label}', f's_add_u32 s{sT0}, s{sT0}, 1', f's_cmp_lt_u32 s{sT0}, {SPIN}',
             f's_cbranch_scc1 {label}_l', f's_branch {label}']
        tails.append('\n'.join(x if x.endswith(':') else '    ' + x for x in L))
        return BR(f's_cmp_lg_u64 s[{cmpreg}:{cmpreg+1}], 0\ns_cbranch_scc1 {label}_s', label)
    sch.slow = slow
    rdl = [f'buffer_load_dword v{STMP}, v{STMP+1}, {R4(RDB)}, 0 offen sc1']
    rdt = [f'v_cmp_eq_u32 s[{sCMP}:{sCMP+1}], 0, v{STMP}']
    sch.add('rd', [It(f'buffer_store_dword v{vONE}, v{SQ}, {R4(RDB)}, 0 offen sc1', 'RDA', cond=lambda: 'rs' in st), FN(lambda: st.update(rda=1)),
                   f'v_min_u32 v{STMP+1}, {NRS-1}, v0', f'v_lshlrev_b32 v{STMP+1}, 2, v{STMP+1}',
                   It(rdl[0], 'RDL', t0=nstart + cfg.get('rd_t', -60)), WV('RDL', 50), rdt[0], slow(f'{nm}_rd', rdl, rdt, sCMP), FN(lambda: st.update(rd=1))], prio=20, key=SCR)

    dfree = lds.alloc('DUM', DUMMY, 256)
    marks = {}
    def touch(srdn, soff, cond=None, t0=-99, gapd=0, pause=0, last=False):
        def after():
            sch.vpause = max(sch.vpause, sch.n + pause); marks.setdefault('touch', []).append(sch.n)
        return sch.grp([f's_mov_b32 m0, {DUMMY}', It(f'buffer_load_dword v{vPF}, {R4(srdn)}, {soff} offen lds', 'TCH'), FN(after)],
                       cond=(lambda: dfree() and (cond is None or cond())), t0=t0, gapd=gapd)
    def chk_dum():
        if 'PFend' in sch.lin and a.need_vm('TCH') is None: lds.rel.add('DUM')
    sch.on_barrier.append(chk_dum)
    sch.touch = touch
    lin = {}
    sch.lin = lin
    PFL = []
    if cfg.get('wpf', 1):
        tv = vTD
        PFL += [It(f'v_min_u32 v{vPF}, 49, v0', cond=xdone, gapd=1), f'v_mul_u32_u24 v{tv}, 26, v{vPF}', f'v_lshrrev_b32 v{tv}, 8, v{tv}',
                f'v_mul_u32_u24 v{tv+1}, 10, v{tv}', f'v_sub_u32 v{vPF}, v{vPF}, v{tv+1}', f'v_lshl_add_u32 v{tv+1}, v{vPF}, 1, 1', f'v_add_u32 v{vPF}, 8, v{vPF}',
                f'v_min_u32 v{vPF}, v{vPF}, v{tv+1}', f'v_mul_u32_u24 v{tv}, 72, v{tv}', f'v_add_lshl_u32 v{vPF}, v{vPF}, v{tv}, 7', FN(lambda: lin.update(tv=1)),
                f's_lshl1_add_u32 s{sPF}, s{sIDX}, s{sTH}', f's_lshr_b32 s{sPF+1}, s{sW}, 1', f's_lshl1_add_u32 s{sPF}, s{sPF}, s{sPF+1}', f's_mul_i32 s{sPF}, s{sPF}, {5*9216}',
                f's_mul_i32 s{sPF+1}, s{sFQ}, 2304', f's_add_u32 s{sPF}, s{sPF}, s{sPF+1}', f'v_add_u32 v{vPF}, s{sPF}, v{vPF}']
        w8 = lambda: ('W', 8) in a.vm and not any(it.tag == ('W', 8) for s_ in sch.streams for it in s_.q)
        PFL += touch(RXS, '0', cond=lambda: tsrd and w8() and ('Schk' in marks or not cfg.get('w2_sel', 1)), t0=nstart + cfg.get('w2_t', 100), pause=cfg.get('w2_pause', 200))
    else: lin['tv'] = 1
    sch.wd_l = -(-(41 if B else 54) // cfg.get('wd_n', 1))
    sch.w17 = lambda: ('W', 17) in a.vm and not any(it.tag == ('W', 17) for s_ in sch.streams for it in s_.q)
    PFL += [It(f'v_min_u32 v{vPF}, {sch.wd_l - 1}, v0', cond=xdone, gapd=1), f'v_lshlrev_b32 v{vPF}, 7, v{vPF}', FN(lambda: lin.update(ok=1))]
    sch.add('dmaP', PFL, prio=cfg.get('pf_prio', 47))

    cEA = lds.alloc(('EA', 'S'), EA, 12288)
    if B: lds.al.append((('EA', 'X'), EA, 12288))
    def scan(tagp, base, lam, cf, l16, l64, l16q, l256, l512q, l16g, pg, qq, eo, rsrd, shf, sfl, t0, prio, prev):
        R = lambda n: base + n
        Im = lambda n: base + 16 + n
        L = []
        if tagp == 'X':
            L += [It(f'buffer_store_dwordx4 v[{R(4*t)}:{R(4*t)+3}], v{vGL}, {R4(RWS)}, s{sG} offen offset:{16*t} sc1', 'XST', t0=t0) for t in range(4)]
        for n in range(1, 16):
            L += [It(f'v_fmac_f32 v{R(n)}, v{lam}, v{R(n-1)}', t0=t0), f'v_fmac_f32 v{Im(n)}, v{lam}, v{Im(n-1)}',
                  f'v_fma_f32 v{R(n)}, -v{lam+1}, v{Im(n-1)}, v{R(n)}', f'v_fmac_f32 v{Im(n)}, v{lam+1}, v{R(n-1)}']
        c = cEA if tagp == 'S' else None
        o1 = 0; o2 = 4096 + 512 * eo
        Z = [It(f'v_mov_b32 v{qq}, 0', cond=(lambda: 'rda' in st and (prev is None or prev in marks))), f'v_mov_b32 v{qq+1}, 0',
             It(f'ds_write_b64 v{vEA}, v[{qq}:{qq+1}] offset:{o1}', tagp + 'EW', cond=c), It(f'ds_write_b64 v{vEA}, v[{qq}:{qq+1}] offset:{o2}', tagp + 'EW')]
        L = (Z + L) if tagp == 'S' else (L + Z)
        L += [It(f'v_mov_b32 v{qq}, v{R(15)}', gapd=1), f'v_mov_b32 v{qq+1}, v{Im(15)}', It(f'ds_write_b64 v{vEA}, v[{qq}:{qq+1}] offset:{o1 + 384}', tagp + 'EW')]
        d1 = [LD, LD + 2, pg]
        L += [It(f'ds_read_b64 v[{d1[i]}:{d1[i]+1}], v{vEA} offset:{o1 + 128*i}', tagp + 'E1') for i in range(3)]
        L += [WL(tagp + 'E1', 4)] + cmac(d1[1], l16, d1[0]) + cmac(pg, l16, d1[1]) + cmac(qq, l16, pg)
        L += [It(f'ds_write_b64 v{vEA}, v[{qq}:{qq+1}] offset:{o2 + 4096}', tagp + 'E2W'), WL(tagp + 'E2W', 3), 's_barrier']
        L += [It(f'ds_read_b64 v[{LD+2*i}:{LD+2*i+1}], v{vER} offset:{o2 + 1024*(i+1)}', (tagp + 'E2', i)) for i in range(3)]
        lds.reader(('EA', tagp), (tagp + 'E2', 2))
        L += [WL((tagp + 'E2', 2), 4)] + cmac(LD + 2, l64, LD) + cmac(LD + 4, l64, LD + 2) + cmac(qq, l64, LD + 4)
        L += [f'v_min_u32 v{qq}, -2, v{qq}', f'v_min_u32 v{qq+1}, -2, v{qq+1}',
              It(f'buffer_store_dwordx2 v[{qq}:{qq+1}], v{vEP}, {R4(rsrd)}, 0 offen sc1', tagp + 'EP', cond=lambda: 'rd' in st), FN(lambda: marks.update({tagp + 'pub': sch.n}))]
        L += cmac(pg, l16q, LD + 4) + [FN(lambda: marks.update({tagp + 'ld': sch.n}))]
        sch.add(tagp + 'pre', L, prio=prio, key=SCR)
        el = [f'buffer_load_dwordx2 v[{TM}:{TM+1}], v{vEL}, {R4(rsrd)}, 0 offen offset:128 sc1', f'buffer_load_dwordx2 v[{TM+2}:{TM+3}], v{vEL}, {R4(rsrd)}, 0 offen offset:256 sc1']
        et = [f'v_max3_u32 v{TM+4}, v{TM}, v{TM+1}, v{TM+2}', f'v_max_u32 v{TM+4}, v{TM+4}, v{TM+3}', f'v_cmp_eq_u32 s[{sCMP+2}:{sCMP+3}], -1, v{TM+4}']
        ok = lambda: 'rd' in st and tagp + 'ld' in marks and (sch.forcing or sch.n >= marks[tagp + 'pub'] + cfg.get('e_delay', 60)) and (tagp == 'S' or 'Sfin' in marks)
        L = [It(el[0], tagp + 'EL', cond=ok), It(el[1], tagp + 'EL'), WV(tagp + 'EL', 50)] + et + [slow(f'{nm}_e{tagp}', el, et, sCMP + 2), FN(lambda: marks.update({tagp + 'chk': sch.n}))]
        L += cmac(TM, l256, TM + 2) + cmul(TM + 2, l512q, TM)
        for k in range(2):
            x, y = TM + 2 + k, TM + k
            L += [f'v_mov_b32 v{y}, v{x}', It(f'v_permlane16_swap_b32 v{x}, v{y}', gapd=2), f'v_add_f32 v{x}, v{x}, v{y}',
                  f'v_mov_b32 v{y}, v{x}', It(f'v_permlane32_swap_b32 v{x}, v{y}', gapd=2), f'v_add_f32 v{x}, v{x}, v{y}']
        L += cmac(pg, l16g, TM + 2) + cmul(TM, cf, pg) + [FN(lambda: marks.update({tagp + 'car': sch.n}))]
        sch.add(tagp + 'mid', L, prio=prio + 1, key=(SCR if tagp == 'S' else base))
        L = [FN(lambda: None, cond=lambda: tagp + 'car' in marks)]
        pc = TM
        for n in range(16):
            pn = TM + 2 if pc == TM else TM
            t = TM + 4 + (n & 1)
            L += cmul(pn, lam, pc)
            L += [f'v_fma_f32 v{t}, v{cf}, v{R(n)}, v{pn}', f'v_fma_f32 v{t}, -v{cf+1}, v{Im(n)}, v{t}',
                  f'v_fma_f32 v{Im(n)}, v{cf}, v{Im(n)}, v{pn+1}', f'v_fmac_f32 v{Im(n)}, v{cf+1}, v{R(n)}']
            if n & 1:
                L += [f'v_cvt_pk_bf16_f32 v{R(n >> 1)}, v{TM+4}, v{TM+5}', f'v_cvt_pk_bf16_f32 v{Im(n >> 1)}, -v{Im(n-1)}, -v{Im(n)}']
            pc = pn
        c2 = lds.alloc(('TA', tagp), TA, 10240)
        dst = lambda t: base + 8 + 16 * (t >> 1) + 4 * (t & 1)
        L += [f's_mul_i32 s{sMX}, s{sW}, 2560', f's_add_u32 s{sMX}, s{sMX}, {TA}',
              f'v_and_b32 v{TM}, 15, v0', f'v_mul_u32_u24 v{TM}, 80, v{TM}', f'v_and_b32 v{TM+1}, 48, v0', f'v_add3_u32 v{TM}, v{TM}, v{TM+1}, s{sMX}',
              f'v_lshrrev_b32 v{TM+1}, 1, v{TM+1}', f'v_bfe_u32 v{TM+2}, v0, 2, 2', f'v_add_u32 v{TM+1}, v{TM+1}, v{TM+2}', f'v_mul_u32_u24 v{TM+1}, 80, v{TM+1}',
              f'v_and_b32 v{TM+2}, 48, v{vST}', f'v_add3_u32 v{TM+1}, v{TM+1}, v{TM+2}, s{sMX}']
        for h in range(2):
            for ri in range(2):
                r = base + 16 * ri + 4 * h
                L.append(It(f'ds_write_b128 v{TM}, v[{r}:{r+3}] offset:{ri*1280}', tagp + 'TW', cond=c2))
            for t in (2 * h, 2 * h + 1):
                for e in range(2):
                    r = dst(t) + 2 * e
                    L.append(It(f'ds_read_b64_tr_b16 v[{r}:{r+1}], v{TM+1} offset:{e*320 + 8*(t & 1)}', tagp + ('TR' if (t, e) == (3, 1) else 'TR0')))
        lds.reader(('TA', tagp), tagp + 'TR')
        vo = vST
        if tagp == 'X':
            vo = TM + 2
            L += [f'v_bfe_i32 v{TM+3}, v0, 4, 1', f'v_and_b32 v{TM+3}, {OOB}, v{TM+3}', f's_sub_u32 s{sG}, s{sJJ}, 6', f's_lshl_b32 s{sG}, s{sG}, 8',
                  f'v_add_u32 v{TM+2}, s{sG}, v{vST}', f'v_or_b32 v{TM+2}, v{TM+2}, v{TM+3}']
        L += [WL(tagp + 'TR', 4)]
        L += [It(f'buffer_store_dwordx4 v[{dst(t)}:{dst(t)+3}], v{vo}, {R4(RWS)}, s{shf} offen offset:{1024*t} sc1', tagp + 'ST') for t in range(4)]
        def fin():
            marks[tagp + 'fin'] = sch.n
            sch.add(tagp + 'flag', [WV(tagp + 'ST', cfg.get('st_age', 130)), It(f'buffer_store_dword v{vONE}, v{vL0}, {R4(RWS)}, s{sfl} offen sc1', 'FL')], prio=30)
        L.append(FN(fin))
        sch.add(tagp + 'fin', L, prio=(prio + 2 if (B and tagp == 'S') else 51.5), key=base)
    scan('S', SS, LAMS, CFS, S_L16, S_L64, S_L16Q, S_L256, S_L512Q, S_L16G, S_PG, SQ, 0, RE0, sHFS, sFS, nstart + 4, 40, None)
    if B: scan('X', SX, LAMX, CFX, X_L16, X_L64, X_L16Q, XPK, XPK + 2, XPK + 4, XPK + 6, SQ, 1, RE1, sHFX, sFX, nstart + 4, 44, 'Sld')

    def outs(G, Uu, dst, t0):
        L = []
        for r in range(4):
            g, u = G + r, Uu + r
            L += [It(f'v_mul_f32 v{u}, v{g}, v{u}', t0=t0), f'v_mul_f32 v{g}, s{sNL}, v{g}', f'v_exp_f32 v{g}, v{g}', f'v_add_f32 v{g}, 1.0, v{g}',
                  f'v_rcp_f32 v{g}, v{g}', f'v_mul_f32 v{g}, v{g}, v{u}']
            if r & 1: L.append(f'v_cvt_pk_bf16_f32 v{dst + (r >> 1)}, v{g-1}, v{g}')
        return L
    lastm = {}
    for u, un in enumerate(U):
        if un['last'] and un.get('m') == 1: lastm[(un['p'], un['bb'])] = 4 * u
    cnt = {}
    def hflag(g, ntot):
        def f():
            cnt[g] = cnt.get(g, 0) + 1
            if cnt[g] == ntot:
                marks[('hst', g)] = sch.n
                sch.add(f'hf{g}', [WV(('ST', g), cfg.get('st_age', 130)), It(f'buffer_store_dword v{vONE}, v{vL0}, {R4(RWS)}, s{sFH} offen offset:{FO[g]} sc1', 'FL', cond=lambda: 'rd' in st), FN(lambda: marks.update({('flag', g): sch.n}))], prio=30)
        return FN(f)
    sHp = [sH, 65, 70, 71]
    sch.add('hb', [f's_add_u32 s{sHp[p]}, s{sH}, {4096*p}' for p in range(1, 4)], prio=95)
    for p in range(4):
        E, O = SET(psets[p][0]), SET(psets[p][1])
        for t in range(4):
            L = outs(E + 4 * t, E + 16 + 4 * t, E + 16 + 4 * t, lastm[(p, 0)] + t + 5) + outs(O + 4 * t, O + 16 + 4 * t, E + 18 + 4 * t, lastm[(p, 1)] + t + 5)
            L += [It(f'buffer_store_dwordx4 v[{E+16+4*t}:{E+19+4*t}], v{vST}, {R4(RWS)}, s{sHp[p]} offen offset:{1024*t} sc1', ('ST', p)), hflag(p, 4)]
            sch.add(f'e{p}{t}', L, prio=cfg.get('eprio', 50) + p, key=('P', p))
    T = SET(tset)
    for tp in range(2):
        t = 2 * tp
        L = outs(T + 4 * t, T + 16 + 4 * t, T + 16 + 4 * t, lastm[(4, 0)] + t + 5) + outs(T + 4 * t + 4, T + 20 + 4 * t, T + 18 + 4 * t, lastm[(4, 0)] + t + 6)
        L += [It(f'buffer_store_dwordx4 v[{T+16+4*t}:{T+19+4*t}], v{vST}, {R4(RWS)}, s{sHT} offen offset:{1024*tp} sc1', ('ST', 4)), hflag(4, 2)]
        sch.add(f'eT{tp}', L, prio=60, key=('P', 4))

    M = []
    owner = {SET(0): ['par'], SET(2): [SCR], SS: [SS], SX: [SX]}
    for u, un in enumerate(U):
        buf = FR + 4 * (u % NF)
        for t in range(4):
            A = un['acc'] + 4 * t
            C = '0' if un['first'] else f'v[{A}:{A+3}]'
            x = xreg(un['s'], un['kp'], t); w = f'v[{buf}:{buf+3}]'
            m = dict(txt=f'v_mfma_f32_16x16x32_bf16 v[{A}:{A+3}], {x if un["swap"] else w}, {w if un["swap"] else x}, {C}', lg=[('F', u), ('XR', un['s'])] if t == 0 else None)
            if un['first'] and t == 0 and un.get('m') == 0:
                keys = list(owner.get(un['key'], []))
                m['pre'] = (lambda keys=keys, u=u: sch.flush(lambda s_: s_.key in keys, why=f'unit {u}'))
                owner[un['key']] = [('P', un['p'])]
                marks[('start', un['p'], un['bb'])] = 4 * u
            M.append(m)
    marks['end'] = len(M)
    marks['tstart'] = marks[('start', 4, 0)]
    if late: M += late(sch, lds, marks, st)
    while sch.read_ok():
        if sch.reads[0]['k'] != 'R': sch.do_barrier(None)
        else: sch.emit_read()
    sch.run(M)
    P.stamp('mfma end')
    sch.report(nm); print('   ', marks)
    return sch, lds, marks
```

```python
from asmlib import *
from lay import *
from sched import *
import ph1
from ph1 import vST, vL0, vONE, SET, sT0, sT1, sCMP

SL = 40960; HO = 24576
vWV = [22, 23, 24, 25, 26, 27]; vPA, vPD = 28, 29
vAW = lambda h, u: (8 + u) if h == 0 else (40 + u)
vAH = lambda h, g: (14 + g) if h == 0 else (46 + g)
vAT = lambda g: 50 + g
vT0, vT1, vT2 = 18, 19, 20
vTK, vXO, vDO = 33, 34, 35
sGA = 86
vOUT, vG, vOG = 55, 56, 57
vFP = 36
ACC2 = 64
acc = lambda g, u: ACC2 + 24 * g + 4 * u
HB, NHB = 0, 3
WB, NWB = 48, 8
XD = SET(2)
RWD = RBM
ROUT = RE1
RDS = RE0
sTL = 89; sPX = [0, 1, 88]; sRX = 40; sAP = 52; sFA = 45; sLO = 46; sHI = 47
sXO = 87; sHB2 = 80; sWBk = [81, 82, 83]
sTT, sNT, sWB, sHB, sM6, sM4, sFHC, sSO = 63, 64, 60, 66, 67, 68, 69, 49

def gen(a, name, P, cfg, tails):
    I = a.I
    order = [(0, 0), (0, 1), (0, 2), (1, 0), (1, 1), (1, 2), (0, 3), (1, 3), (2, 0), (2, 1), (2, 2), (2, 3), (3, 0), (3, 1), (3, 2), (3, 3)]
    ka = [8 * jp + p for p, jp in order] + [32, 34]
    need = [0] * 6 + [1] * 5 + [2] * 4 + [3] * 3
    ph = lambda i: (i + 1) % 4
    AV = SET(3)
    RV = SET(3) + 24
    SRC = [sAP, sAP + 1, sRX, sRX + 1, sRX + 2]; SRM = [43, 44, 45, 48, 54]; sPEND = 55
    vLP, vLD = 58, 59
    fetch = lambda k, sb: [f'buffer_load_dwordx4 v[{AV+12*k+4*i}:{AV+12*k+4*i+3}], v{vST}, {R4(RWS)}, s{sb} offen offset:{1024*i} sc1' for i in range(3)]
    look = f'buffer_load_dword v{vLD}, v{vLP}, {R4(RWS)}, 0 offen sc1'
    def allset(base, n):
        t = [f'v_max3_u32 v{vT0+i}, v{base+3*i}, v{base+3*i+1}, v{base+3*i+2}' for i in range(3)]
        k = (n - 9) // 2
        t += [f'v_max3_u32 v{vT0+(i % 3)}, v{base+9+2*i}, v{base+10+2*i}, v{vT0+(i % 3)}' for i in range(k)]
        assert 9 + 2 * k + 1 == n
        t += [f'v_max_u32 v{vT0+(k % 3)}, v{base+n-1}, v{vT0+(k % 3)}', f'v_max3_u32 v{vT0}, v{vT0}, v{vT1}, v{vT2}', f'v_cmp_eq_u32 s[{sCMP}:{sCMP+1}], -1, v{vT0}']
        return t
    def late(sch, lds, marks, st):
        n0 = marks['end']
        PD = cfg.get('PD2', 4)
        ok = {}
        t_set = marks[('start', 0, 0)] + 16
        L = [It(f's_mul_i32 s{sTT}, s{sIDX}, 43', t0=t_set), f's_lshr_b32 s{sTT}, s{sTT}, 7', f's_mul_i32 s{sNT}, s{sTT}, 3', f's_sub_u32 s{sNT}, s{sIDX}, s{sNT}',
             f's_lshl_b32 s{sWB}, s{sTH}, 3', f's_add_u32 s{sTT}, s{sTT}, s{sWB}',
             f's_mov_b32 s{RWD}, s{S_WD}', f's_and_b32 s{RWD+1}, s{S_WD+1}, 0xffff', f's_mov_b32 s{RWD+2}, {4608*1152}',
             f's_mul_i32 s{sWB}, s{sFQ}, {1152*1152}', f's_mul_i32 s{sM6}, s{sNT}, 384', f's_add_u32 s{sWB}, s{sWB}, s{sM6}',
             f's_lshl_b32 s{sHB}, s{sTT}, 1', f's_lshr_b32 s{sM6}, s{sW}, 1', f's_add_u32 s{sHB}, s{sHB}, s{sM6}', f's_mul_i32 s{sHB}, s{sHB}, 144',
             f's_mul_i32 s{sM6}, s{sFQ}, 36', f's_add_u32 s{sHB}, s{sHB}, s{sM6}', f's_and_b32 s{sM6}, s{sW}, 1', f's_add_u32 s{sHB}, s{sHB}, s{sM6}',
             f's_lshl_b32 s{sHB2}, s{sHB}, 12', f's_mul_i32 s{sM6}, s{sM6}, {3*4096}', f's_add_u32 s{sHB}, s{sHB2}, s{sM6}',
             f's_lshl_b32 s{sFHC}, s{sTT}, 2', f's_add_u32 s{sFHC}, s{sFHC}, s{sFQ}', f's_lshl_b32 s{sFHC}, s{sFHC}, 9', f's_add_u32 s{sFHC}, s{sFHC}, {FH_OFF}',
             f'v_lshrrev_b32 v{vPA}, 3, v0', f'v_mul_u32_u24 v{vPA}, 1152, v{vPA}', f'v_and_b32 v{vPD}, 7, v0', f'v_lshl_add_u32 v{vPA}, v{vPD}, 4, v{vPA}',
             f'v_and_b32 v{vPD}, 48, v0', f'v_lshlrev_b32 v{vPD}, 1, v{vPD}', f'v_xor_b32 v{vPD}, v{vPA}, v{vPD}']
        for k in range(3):
            L += [f's_mul_i32 s{sM6}, s{sW}, 6', f's_add_u32 s{sM6}, s{sM6}, {2*k}', f's_and_b32 s{sM4}, s{sM6}, 4', f's_mul_i32 s{sM4}, s{sM4}, {24*1152}', f's_add_u32 s{sWBk[k]}, s{sWB}, s{sM4}',
                  f's_and_b32 s{sM4}, s{sM6}, 7', f's_mul_i32 s{sM4}, s{sM4}, 9216',
                  f's_lshr_b32 s{sM6}, s{sM6}, 3', f's_lshl_b32 s{sM6}, s{sM6}, 7', f's_add_u32 s{sM6}, s{sM6}, s{sM4}',
                  f'v_add_u32 v{vWV[2*k]}, s{sM6}, v{vPD}', f'v_add_u32 v{vWV[2*k+1]}, 8192, v{vWV[2*k]}']
        L += [f's_mul_i32 s{sM6}, s{sW}, 6144', f's_lshl_b32 s{sM4}, s{sW}, 12', FN(lambda: ok.update(set=1))]
        sch.add('set2', L, prio=49)
        def done(nm): return not any(s_.name == nm and s_.q for s_ in sch.streams)
        def poll(key, g, w0, nw, t0, age):
            ld = [f'buffer_load_dword v{vPD}, v{vPA}, {R4(RWS)}, s{sFHC} offen offset:{4*w0} sc1']
            ts = [f'v_cmp_eq_u32 s[{sCMP}:{sCMP+1}], 0, v{vPD}']
            own = lambda: 'set' in ok and 'rd' in st and ('flag', g) in marks and sch.n >= marks[('flag', g)] + cfg.get('poll_m', 80) and 'Sfin' in marks and done('Sflag')
            return [It(f'v_min_u32 v{vPA}, {nw-1}, v0', t0=t0 - 4, cond=own), f'v_lshlrev_b32 v{vPA}, 2, v{vPA}',
                    It(ld[0], ('HP', key), t0=t0), WV(('HP', key), age), ts[0],
                    sch.slow(f'{name}_hp{key}', ld, ts, sCMP), FN(lambda: (ok.update({key: 1}), marks.update({('poll', key): sch.n})))]
        tpre = marks[('start', 3, 0)] + cfg.get('pre_t', 100)
        pa = cfg.get('poll_age', 100)
        pt = cfg.get('poll_t', [-260, 30, 280, 470])
        sch.add('poll', poll(0, 1, 0, 24, n0 + pt[0], 60) + poll(1, 2, 24, 20, n0 + pt[1], pa) + poll(2, 3, 44, 16, n0 + pt[2], pa) + poll(3, 4, 60, 20, n0 + pt[3], pa), prio=9)
        sch.dt_from = n0
        sch.vgap = lambda n: (cfg.get('vgap', 4) if n >= marks[('start', 0, 0)] else 0)
        DW, DH = [], []
        for i in range(18):
            base = ph(i) * SL
            cw = lds.alloc(('G', i), base, HO); ch = lds.alloc(('G', i), base + HO, SL - HO)
            g = need[i]
            gd = cfg.get('pgap', 0) if i < 3 else 0
            W = []
            for k in range(3):
                W += sch.grp([f's_add_u32 m0, s{sM6}, {base + 2048*k}', f's_add_u32 s{sSO}, s{sWBk[k] if i < 16 else sWB}, {ka[i]*32*1152}'] +
                             [It(f'buffer_load_dwordx4 v{vWV[2*k+e]}, {R4(RWD)}, s{sSO} offen offset:{1024*e} lds', ('G', i), gapd=(gd if e else 0)) for e in range(2)],
                             cond=(lambda cw=cw: cw() and 'set' in ok), t0=tpre, gapd=gd)
            H = sch.grp([f's_add_u32 m0, s{sM4}, {base + HO}', f's_add_u32 s{sSO}, s{sHB if i < 16 else sHB2}, {H_OFF + ka[i]*4096}'] +
                        [It(f'buffer_load_dwordx4 v{vST}, {R4(RWS)}, s{sSO} offen offset:{1024*t} sc1 lds', ('G', i), gapd=(gd if t else 0)) for t in range(4)],
                        cond=(lambda ch=ch, g=g: ch() and g in ok), gapd=gd)
            DH += W + H
        sch.add('dma2', DW + DH, prio=12)
        L = [It(f'v_lshrrev_b32 v{vT0}, 2, v0', t0=marks[('start', 3, 0)], cond=lambda: 'Sfin' in marks and 'set' in ok and 'px' in ok), f'v_lshlrev_b32 v{vT0}, 7, v{vT0}', f'v_bfe_u32 v{vT1}, v0, 3, 2',
             f'v_lshl_add_u32 v{vT0}, v{vT1}, 5, v{vT0}', f'v_and_b32 v{vT1}, 3, v0', f'v_lshl_add_u32 v{vT0}, v{vT1}, 3, v{vT0}',
             f's_lshr_b32 s{sT1}, s{sW}, 1', f's_mul_i32 s{sT1}, s{sT1}, 6']
        for u in range(6):
            L += [f's_and_b32 s{sCMP+2}, s{sT1}, 3', f's_lshl_b32 s{sCMP+2}, s{sCMP+2}, 5', f's_lshr_b32 s{sCMP+3}, s{sT1}, 2', f's_lshl_b32 s{sCMP+3}, s{sCMP+3}, 13',
                  f's_or_b32 s{sCMP+2}, s{sCMP+2}, s{sCMP+3}', f'v_xor_b32 v{vAW(0, u)}, s{sCMP+2}, v{vT0}', f's_add_u32 s{sT1}, s{sT1}, 1']
        L += [f's_and_b32 s{sT1}, s{sW}, 1', f's_lshl_b32 s{sT1}, s{sT1}, 13', f's_add_u32 s{sT1}, s{sT1}, {HO}', f'v_add_u32 v{vT0}, s{sT1}, v{vST}']
        for g in range(4):
            L += [f's_xor_b32 s{sT1}, s{sFQ}, {g}', f's_lshl_b32 s{sT1}, s{sT1}, 10', f'v_add_u32 v{vAH(0, g)}, s{sT1}, v{vT0}']
        sch.add('adr2', L, prio=cfg.get('adrprio', 45), key='adr2')
        L = [It(f'v_add_u32 v{vAH(1, g)}, {2*SL}, v{vAH(0, g)}', t0=n0) for g in range(4)] + [f'v_add_u32 v{vAW(1, u)}, {2*SL}, v{vAW(0, u)}' for u in range(6)]
        sch.add('adr3a', L, prio=7, key='adr3a')
        L = [It(f'v_add_u32 v{vT0}, {SL}, v{vT0}', t0=n0)]
        for g in range(4):
            L += [f's_xor_b32 s{sT1}, s{sFQ}, {g}', f's_lshr_b32 s{sCMP+2}, s{sT1}, 1', f's_lshl_b32 s{sCMP+2}, s{sCMP+2}, 10', f's_and_b32 s{sT1}, s{sT1}, 1',
                  f's_lshl_b32 s{sT1}, s{sT1}, 3', f's_add_u32 s{sT1}, s{sT1}, s{sCMP+2}', f'v_add_u32 v{vAT(g)}, s{sT1}, v{vT0}']
        sch.add('adr3', L, prio=45, key='adr3')
        if cfg.get('wdpf', 1):
            sp = ph1.sPF
            L = [It(f's_mul_i32 s{sp}, s{sTH}, 24', cond=lambda: 'set' in ok and 'ok' in sch.lin), f's_add_u32 s{sp}, s{sp}, s{sIDX}', f's_lshl_b32 s{sp}, s{sp}, 2',
                 f's_add_u32 s{sp}, s{sp}, s{sW}', f's_mul_i32 s{sp}, s{sp}, {54*128}', f's_mul_i32 s{sp+1}, s{sFQ}, {1152*1152}', f's_add_u32 s{sp}, s{sp}, s{sp+1}']
            for k in range(cfg.get('wd_n', 1)):
                L += sch.touch(RWD, f's{sp}', cond=sch.w17, t0=t_set + cfg.get('wdpf_t', 0) + k * cfg.get('wd_dt', 120), pause=cfg.get('wd_pause', 260)) + [f's_add_u32 s{sp}, s{sp}, {128*sch.wd_l}']
            L.append(FN(lambda: sch.lin.update(PFend=1)))
            sch.add('dmaP2', L, prio=8)
        M = []
        NK = 36
        ND = cfg.get('nd', 7)
        K1 = NK - ND
        mi = lambda k, u: n0 + 24 * k + 4 * u if k < K1 else n0 + 24 * K1 + 18 * (k - K1) + 3 * u
        mu = lambda un: mi(un // 6, un % 6) if un >= 0 else n0 + 4 * un
        n1 = mi(NK, 0)
        def hread(k, g, free, r=None, tag=None, use=None):
            i, kp = divmod(k, 2)
            if r is None: r = HB + 16 * (k % NHB) + 4 * g
            off = (ph(i) & 1) * SL + kp * 4096
            if i < 16:
                sch.reads.append(dict(k='R', txt=f'ds_read_b128 a[{r}:{r+3}], v{vAH(ph(i) >> 1, g)} offset:{off}', tag=tag or ('HR', k), free=free, use=use or mi(k, 0)))
            else:
                off = (i - 16) * SL + kp * 4096
                for e in range(2):
                    sch.reads.append(dict(k='R', txt=f'ds_read_b64 a[{r+2*e}:{r+2*e+1}], v{vAT(g)} offset:{off + 2048*e}', tag=tag or ('HR', k), free=free, use=use or mi(k, 0)))
        def bar(i, free):
            keys = {0: 'adr2', 1: 'adr3a', 4: 'adr3', K1 // 2: 'fin'}
            sch.reads.append(dict(k='B', vm=[('G', i)], free=free, name=f'g{i}', fn=(lambda: sch.flush(lambda s_: s_.key == keys[i], why='adr')) if i in keys else None))
        lo = n0 - 15
        bar(0, lo - 1)
        for g in range(4): hread(0, g, lo)
        wreg = lambda un: WB + 4 * (un % NWB) if un < 6 * K1 else 80 + 4 * (un - 6 * K1)
        for k in range(NK):
            i, kp = divmod(k, 2)
            for u in range(6):
                un = 6 * k + u
                free = max(mu(un - PD - (1 if k >= K1 else 0)), lo)
                if k + 1 < NK and u >= 2:
                    if u == 2 and kp == 1: bar(i + 1, free - 1)
                    if u > 2 or k + 1 < K1: hread(k + 1, u - 2, free)
                if kp == 0 and u == PD + 1 and i + 3 < 18:
                    sch.reads.append(dict(k='B', vm=[], free=free - 1))
                r = wreg(un)
                off = (ph(i) & 1) * SL + kp * 4096
                for e in range(2):
                    sch.reads.append(dict(k='R', txt=f'ds_read_b64_tr_b16 a[{r+2*e}:{r+2*e+1}], v{vAW(ph(i) >> 1, u)} offset:{off + 2048*e}', tag=('WR', un), free=free, use=mi(k, u)))
                lds.reader(('G', i), ('WR', un))
                gs = range(4) if k < K1 else range(1, 4)
                for g in gs:
                    A = acc(g, u); h = HB + 16 * (k % NHB) + 4 * g
                    C = '0' if k == 0 else f'v[{A}:{A+3}]'
                    m = dict(txt=f'v_mfma_f32_16x16x32_bf16 v[{A}:{A+3}], a[{r}:{r+3}], a[{h}:{h+3}], {C}', lg=[('WR', un), ('HR', k)] if g == gs[0] else None)
                    if un == 0 and g == 0:
                        m['pre'] = lambda: (sch.flush(lambda s_: s_.key in ([('P', 2), ('P', 3), ('P', 4)] if cfg.get('flush2') else [('P', 2)]), why='gemm2 start'), P.stamp('p2 start'))
                    M.append(m)
        for k in range(K1, NK):
            h = WB + 4 * (k - K1)
            hread(k, 0, mi(K1, 1), r=h, tag=('H0', k), use=n1 + 6 * (k - K1))
            for u in range(6):
                A = acc(0, u); r = wreg(6 * k + u)
                m = dict(txt=f'v_mfma_f32_16x16x32_bf16 v[{A}:{A+3}], a[{r}:{r+3}], a[{h}:{h+3}], v[{A}:{A+3}]', lg=[('H0', k)] if u == 0 else None)
                if k == K1 and u == 0: m['pre'] = lambda: P.stamp('pass2')
                if 6 * (k - K1) + u == cfg.get('sflush', 3): m['pre'] = lambda: sch.flush(lambda s_: s_.name.startswith('send'), why='sends')
                M.append(m)
        L = [It(f's_mul_i32 s{sTL}, s{sTH}, 24', t0=marks[('start', 0, 0)] + cfg.get('px_t', 10)), f's_add_u32 s{sTL}, s{sTL}, s{sIDX}', f's_lshl_b32 s{sTL}, s{sTL}, 2',
             f'v_mov_b32 v{vFP}, {OOB}']
        for g in (1, 2, 3):
            r = sPX[g - 1]
            L += [f's_xor_b32 s{r}, s{sFQ}, {g}', f's_add_u32 s{r}, s{r}, s{sTL}', f's_lshl_b32 s{r}, s{r}, 2', f's_add_u32 s{r}, s{r}, s{sW}',
                  f's_lshl_b32 s{sT1}, s{r}, 5', f's_add_u32 s{sT1}, s{sT1}, {FP_OFF + 4*(g-1)}', f'v_writelane_b32 v{vFP}, s{sT1}, {g}',
                  f's_mul_i32 s{r}, s{r}, 9216', f's_add_u32 s{r}, s{r}, {PX_OFF + 3072*(g-1)}']
        L += [FN(lambda: ok.update(px=1))]
        sch.add('pxr', L, prio=cfg.get('px_prio', 48))
        for g in (1, 2, 3):
            L = []
            for i in range(3):
                r = acc(g, 2 * i)
                L += [It(f'v_cvt_pk_bf16_f32 v{r+d}, v{r+2*d}, v{r+2*d+1}', t0=mi(NK - 1, 2 * i + 1) + g + 4) for d in range(4)]
                L += [It(f'buffer_store_dwordx4 v[{r}:{r+3}], v{vST}, {R4(RWS)}, s{sPX[g-1]} offen offset:{1024*i} sc1', 'PS')]
            sch.add(f'send{g}', L, prio=5)
        sent = lambda: all(done(f'send{g}') for g in (1, 2, 3))
        sch.add('pxf', [FN(lambda: None, cond=sent), WV('PS', cfg.get('ps_age', 30)), It(f'buffer_store_dword v{vONE}, v{vFP}, {R4(RWS)}, 0 offen sc1', 'FL')], prio=4)
        t = sAP + 2
        L = [It(f's_add_u32 s{sFA}, s{sTL}, s{sFQ}', t0=n0 + 100, cond=lambda: done('adr3') and 'px' in ok and done('fx')), f's_lshl2_add_u32 s{sFA}, s{sFA}, s{sW}',
             f's_lshl_b32 s{sRX}, s{sFA}, 5', f's_add_u32 s{sRX}, s{sRX}, {FP_OFF - 8}', f'v_min_u32 v{vLP}, 4, v0', f'v_lshl_add_u32 v{vLP}, v{vLP}, 2, s{sRX}',
             f's_mul_i32 s{sRX}, s{sFA}, 9216', f's_add_u32 s{sRX}, s{sRX}, {PX_OFF}', f's_add_u32 s{sRX+1}, s{sRX}, 3072', f's_add_u32 s{sRX+2}, s{sRX}, 6144',
             f's_lshl2_add_u32 s{sAP}, s{sXO}, s{sFQ}', f's_lshr_b32 s{t+1}, s{sAP}, 1', f's_lshl_b32 s{t+1}, s{t+1}, 7', f's_add_u32 s{t+1}, s{t+1}, {FA_OFF}',
             f's_lshr_b32 s{t}, s{sW}, 1', f's_lshl1_add_u32 s{t}, s{sNT}, s{t}', f's_mul_i32 s{sAP}, s{sAP}, 6', f's_add_u32 s{sAP}, s{sAP}, s{t}',
             f's_mul_i32 s{sAP}, s{sAP}, 6144', f's_add_u32 s{sAP}, s{sAP}, {AP_OFF}', f's_add_u32 s{sAP+1}, s{sAP}, 3072',
             f's_mul_i32 s{t}, s{t}, 22', f's_lshr_b32 s{sFA}, s{t}, 5', f's_lshl2_add_u32 s{sFA}, s{sFA}, s{t+1}', f'v_writelane_b32 v{vLP}, s{sFA}, 0',
             f's_add_u32 s{t}, s{t}, 11', f's_lshr_b32 s{sFA}, s{t}, 5', f's_lshl2_add_u32 s{sFA}, s{sFA}, s{t+1}', f'v_writelane_b32 v{vLP}, s{sFA}, 1',
             f's_mov_b32 s{sLO}, 0x00003f80', f's_mov_b32 s{sHI}, 0x3f800000', FN(lambda: ok.update(rx=1))]
        sch.add('rxs', L, prio=69)
        L = [It(look, 'LK', t0=n1 + cfg.get('lk_t', -130), cond=lambda: 'rx' in ok and done('fin') and done('poll')), WV('LK', cfg.get('lk_age', 30)),
             f'v_cmp_eq_u32 s[{sCMP}:{sCMP+1}], 0, v{vLD}', It(f's_and_b32 s{sPEND}, s{sCMP}, 31', gapd=2)]
        L += [It(f's_bitcmp1_b32 s{sPEND}, {k}\ns_cselect_b32 s{SRM[k]}, {OOB}, s{SRC[k]}', k='S') for k in range(5)]
        for k in range(5): L += [It(t, 'AL', cond=(sent if cfg.get('lk_late') else lambda: done('dma2'))) for t in fetch(k, SRM[k])]
        L += [It(look, 'LK2', t0=n1 + cfg.get('lk2_t', 36), cond=sent)]
        sch.add('afp', L, prio=6)
        vg = sch.vgap
        sch.vgap = lambda n: vg(n) if n < n1 else cfg.get('vgapF', 2)
        XA_ = 96
        L = [It(f's_lshl_b32 s{sXO}, s{sTT}, 1', t0=marks[('start', 3, 0)], cond=lambda: 'set' in ok and 'Sfin' in marks and done('dmaP2')), f's_and_b32 s{sGA}, s{sW}, 1', f's_add_u32 s{sXO}, s{sXO}, s{sGA}',
             f'v_bfe_u32 v{vTK}, v0, 2, 2', f'v_lshlrev_b32 v{vTK}, 4, v{vTK}', f'v_and_b32 v{vXO}, 3, v0', f's_lshl_b32 s{sGA}, s{sXO}, 4', f's_add_u32 s{sGA}, s{sGA}, s{sFQ}',
             f's_lshl_b32 s{sGA}, s{sGA}, 2', f'v_add3_u32 v{vTK}, v{vTK}, v{vXO}, s{sGA}',
             f's_lshr_b32 s{sGA}, s{sW}, 1', f's_add_u32 s{sGA}, s{sGA}, s{sNT}', f's_add_u32 s{sGA}, s{sGA}, s{sNT}', f's_mul_i32 s{sGA}, s{sGA}, 192',
             f'v_lshrrev_b32 v{vDO}, 4, v0', f'v_lshlrev_b32 v{vDO}, 3, v{vDO}', f'v_add_u32 v{vDO}, s{sGA}, v{vDO}',
             f'v_mul_u32_u24 v{vXO}, 1152, v{vTK}', f'v_add_u32 v{vXO}, v{vXO}, v{vDO}',
             f's_mov_b32 s{RDS}, s{S_DSK}', f's_and_b32 s{RDS+1}, s{S_DSK+1}, 0xffff', f's_mov_b32 s{RDS+2}, 1152',
             f's_mov_b32 s{ROUT}, s{S_OUT}', f's_and_b32 s{ROUT+1}, s{S_OUT+1}, 0xffff', f's_mov_b32 s{ROUT+2}, {2048*2304}', f's_mov_b32 s{ROUT+3}, 0x20000']
        for u in range(6):
            L += [It(f'buffer_load_dwordx2 a[{XA_+2*u}:{XA_+2*u+1}], v{vXO}, {R4(RX)}, 0 offen offset:{32*u}', 'FX', t0=marks['tstart'] + 64, gapd=6),
                  It(f'buffer_load_dwordx2 a[{XA_+12+2*u}:{XA_+13+2*u}], v{vDO}, {R4(RDS)}, 0 offen offset:{32*u}', 'FX', gapd=3)]
        sch.add('fx', L, prio=46)
        tf = n0 + 48 * 6
        XL = SET(3); DL = SET(3) + 12
        gl = [f'buffer_load_dword v{vT1}, v{vT0}, {R4(RWS)}, s{sGA} offen sc1']
        gt = [f'v_cmp_eq_u32 s[{sCMP+2}:{sCMP+3}], 0, v{vT1}']
        L = [It(f's_lshl_b32 s{sGA}, s{sXO}, 8', t0=tf, cond=lambda: ('hst', 3) in marks and 'rx' in ok and done('fx')), f's_add_u32 s{sGA}, s{sGA}, {FS_OFF + 128}', f'v_mov_b32 v{vT0}, 0',
             It(gl[0], 'GP'), WV('GP', pa), gt[0], sch.slow(f'{name}_gp', gl, gt, sCMP + 2),
             f'v_lshlrev_b32 v{vT1}, 2, v{vTK}', f's_mov_b32 s{sGA}, {G_OFF}', It(f'buffer_load_dword v{vG}, v{vT1}, {R4(RWS)}, s{sGA} offen sc1', 'FI'),
             f'v_lshlrev_b32 v{vOUT}, 1, v{vXO}', WV('FX', 0)]
        for d in range(12):
            x, k, o = XL + d, DL + d, XD + 2 * d
            L += [f'v_accvgpr_read_b32 v{x}, a{XA_+d}', f'v_accvgpr_read_b32 v{k}, a{XA_+12+d}',
                  f'v_lshlrev_b32 v{o}, 16, v{x}', f'v_lshlrev_b32 v{o+1}, 16, v{k}', f'v_mul_f32 v{o}, v{o}, v{o+1}',
                  f'v_and_b32 v{x}, 0xffff0000, v{x}', f'v_and_b32 v{k}, 0xffff0000, v{k}', f'v_mul_f32 v{x}, v{x}, v{k}',
                  f'v_cvt_pk_bf16_f32 v{x}, v{o}, v{x}', f'v_lshlrev_b32 v{o}, 16, v{x}', f'v_and_b32 v{o+1}, 0xffff0000, v{x}']
        L += [WV('FI', pa)]
        L += [f'v_cvt_pk_bf16_f32 v{vG}, v{vG}, v{vG}', f'v_lshlrev_b32 v{vG}, 16, v{vG}', f'v_mul_f32 v{vG}, s{ph1.sNL}, v{vG}', f'v_exp_f32 v{vG}, v{vG}',
              f'v_add_f32 v{vG}, 1.0, v{vG}', f'v_rcp_f32 v{vG}, v{vG}', f'v_cvt_pk_bf16_f32 v{vG}, v{vG}, v{vG}', f'v_lshlrev_b32 v{vG}, 16, v{vG}',
              f'v_sub_f32 v{vOG}, 1.0, v{vG}', f'v_cvt_pk_bf16_f32 v{vOG}, v{vOG}, v{vOG}', f'v_lshlrev_b32 v{vOG}, 16, v{vOG}']
        L += [f'v_mul_f32 v{XD+d}, v{vG}, v{XD+d}' for d in range(24)]
        sch.add('fin', L, prio=70, key='fin')
        return M

    sch, lds, marks = ph1.gen_phase1(a, name, False, P, cfg, tails, late)
    sch.flush(why='end')
    P.stamp('sent')
    lb = f'{name}_rx'
    I(f's_mov_b32 s{sT0}, 0')
    I(f's_cmp_eq_u32 s{sPEND}, 0')
    a.wait(vm='AL')
    I(f's_cbranch_scc1 {lb}')
    a.wait(vm='LK2')
    I(f's_branch {lb}_w')
    a.label(f'{lb}_l')
    I(look)
    I(f's_add_u32 s{sT0}, s{sT0}, 1')
    I('s_waitcnt vmcnt(0)')
    a.label(f'{lb}_w')
    I(f'v_cmp_ne_u32 s[{sCMP}:{sCMP+1}], 0, v{vLD}')
    I(f's_cmp_ge_u32 s{sT0}, {SPIN}')
    I(f's_cbranch_scc1 {lb}')
    I(f's_and_b32 s{sCMP}, s{sCMP}, s{sPEND}')
    I(f's_cbranch_scc0 {lb}_l')
    for k in range(5):
        I(f's_bitcmp1_b32 s{sCMP}, {k}')
        I(f's_cbranch_scc0 {lb}_k{k}')
        for t in fetch(k, SRC[k]): I(t)
        a.label(f'{lb}_k{k}')
    I(f's_andn2_b32 s{sPEND}, s{sPEND}, s{sCMP}')
    I(f's_cbranch_scc1 {lb}_l')
    a.wait_all(lg=False)
    a.label(lb)
    P.stamp('recv')
    O = acc(0, 0)
    for i in range(3):
        for g in range(3):
            for d in range(4):
                r = RV + 12 * g + 4 * i + d; o = O + 8 * i + 2 * d
                I(f'v_dot2_f32_bf16 v{o}, v{r}, s{sLO}, v{o}')
                I(f'v_dot2_f32_bf16 v{o+1}, v{r}, s{sHI}, v{o+1}')
        for d in range(8): I(f'v_fma_f32 v{AV+8*i+d}, v{vG}, v{AV+8*i+d}, v{XD+8*i+d}')
        for d in range(8): I(f'v_fmac_f32 v{AV+8*i+d}, v{vOG}, v{O+8*i+d}')
        for u in (2 * i, 2 * i + 1):
            I(f'buffer_store_dwordx4 v[{AV+4*u}:{AV+4*u+3}], v{vOUT}, {R4(ROUT)}, 0 offen offset:{64*u} {cfg.get("out_aux", "")}')
    P.stamp('stored')
    return sch
```

```python
from asmlib import *
from lay import *
from sched import *
import ph1
from ph1 import vST, vL0, vONE, SET, sT0, sT1, sCMP

SL = 36864
vC = [33, 34, 35, 36]; vPA, vPD = 37, 38
AD = 8
vAC = lambda h, kp: AD + 4 * h + kp
ACC2 = 176
acc = lambda tl, u: ACC2 + 36 * tl + 4 * u
HB, NHB = 0, 16
CB, NCB = 128, 12
RC = RBM
sTT, sHB, sM9, sFSC, sSO, sSO2 = 80, 81, 72, 73, 49, 84

def gen(a, name, P, cfg, tails):
    I = a.I
    ph = lambda i: (i + 1) % 4
    def late(sch, lds, marks, st):
        n0 = marks['end']
        PD = cfg.get('PD3', 8)
        ok = {}
        t_set = marks[('start', 0, 0)] + 16
        L = [It(f's_lshl_b32 s{sTT}, s{sTH}, 3', t0=t_set), f's_add_u32 s{sTT}, s{sTT}, s{sIDX}', f's_sub_u32 s{sTT}, s{sTT}, 24',
             It(f's_cmp_lt_u32 s{sW}, 2\ns_cselect_b32 s{RC}, s{S_CRE}, s{S_CIM}\ns_cselect_b32 s{RC+1}, s{S_CRE+1}, s{S_CIM+1}', k='S'),
             f's_and_b32 s{RC+1}, s{RC+1}, 0xffff',
             f's_lshl_b32 s{sHB}, s{sTT}, 1', f's_lshr_b32 s{sM9}, s{sW}, 1', f's_add_u32 s{sHB}, s{sHB}, s{sM9}',
             f's_lshl_b32 s{sFSC}, s{sHB}, 8', f's_add_u32 s{sFSC}, s{sFSC}, {FS_OFF}',
             f's_mul_i32 s{sHB}, s{sHB}, {36*4096}', f's_and_b32 s{sM9}, s{sW}, 1', f's_lshl_b32 s{sSO2}, s{sM9}, 11', f's_add_u32 s{sHB}, s{sHB}, s{sSO2}',
             f's_add_u32 s{sHB}, s{sHB}, {HF_OFF}',
             f'v_and_b32 v{vPA}, 7, v0', f'v_lshrrev_b32 v{vPD}, 4, v0', f'v_xor_b32 v{vPA}, v{vPA}, v{vPD}', f'v_lshlrev_b32 v{vPA}, 4, v{vPA}',
             f's_lshl_b32 s{sSO2}, s{sM9}, 6', f'v_xor_b32 v{vPA}, s{sSO2}, v{vPA}',
             f's_lshl_b32 s{sSO2}, s{sFQ}, 1', f's_add_u32 s{sSO2}, s{sSO2}, s{sM9}', f's_mul_i32 s{sSO2}, s{sSO2}, 72',
             f'v_lshrrev_b32 v{vPD}, 3, v0', f'v_add_u32 v{vPD}, s{sSO2}, v{vPD}', f'v_mul_u32_u24 v{vPD}, 1152, v{vPD}', f'v_add_u32 v{vC[0]}, v{vPD}, v{vPA}',
             f'v_xor_b32 v{vC[1]}, 64, v{vC[0]}', f'v_add_u32 v{vC[1]}, 8192, v{vC[1]}', f'v_add_u32 v{vC[2]}, 16384, v{vC[0]}', f'v_add_u32 v{vC[3]}, 16384, v{vC[1]}',
             f's_mul_i32 s{sM9}, s{sW}, 9216', f'v_min_u32 v{vPA}, 39, v0', f'v_lshlrev_b32 v{vPA}, 2, v{vPA}', FN(lambda: ok.update(set=1))]
        sch.add('set2', L, prio=49)
        ld = [f'buffer_load_dword v{vPD}, v{vPA}, {R4(RWS)}, s{sFSC} offen sc1']
        ts = [f'v_cmp_eq_u32 s[{sCMP}:{sCMP+1}], 0, v{vPD}']
        own = lambda: 'Xfin' in marks and not any(s_.name in ('Sflag', 'Xflag') and s_.q for s_ in sch.streams)
        sch.add('poll', [It(ld[0], 'SP', t0=n0 - cfg.get('sp_t', 190), cond=lambda: 'set' in ok and 'rd' in st and own(), gapd=0), WV('SP', 40), ts[0],
                         sch.slow(f'{name}_sp', ld, ts, sCMP), FN(lambda: ok.update(h=1))], prio=15, key='poll')
        sch.dt_from = n0
        sch.extra = lambda n: (cfg.get('extraB', 1) if n >= n0 else 0)
        sch.vgap = lambda n: (cfg.get('vgapB', 4) if n >= n0 else (cfg.get('vgapT', 7) if n >= marks['tstart'] else (4 if n >= marks[('start', 0, 0)] else 0)))
        tpre = marks[('start', 3, 0)] + cfg.get('pre_t', 100)
        mi = lambda kap, u: n0 + 18 * kap + 2 * u
        D = []
        for i in range(9):
            base = ph(i) * SL
            c = lds.alloc(('C', i), base, SL)
            gd = cfg.get('pgap', 0) if i < 3 else 0
            for k, ps in enumerate(([0, 1, 2, 3], [0, 1, 2, 3], [0])):
                D += sch.grp([f's_add_u32 m0, s{sM9}, {base + 4096*k}', f's_mov_b32 s{sSO}, {128*i + 4*9216*k}'] +
                             [It(f'buffer_load_dwordx4 v{vC[p]}, {R4(RC)}, s{sSO} offen offset:{1024*p} lds', ('C', i), gapd=(gd if p else 0)) for p in ps],
                             cond=(lambda c=c: c() and 'set' in ok), t0=tpre, gapd=gd)
        sch.add('dma2', D, prio=11.5)
        Hs = []
        for kap in range(36):
            r = HB + 8 * (kap % NHB)
            t0 = marks['tstart'] + 16 * (kap // 4 + 1) if kap < NHB else mi(kap - NHB + 1, 0)
            t0 = max(t0, mi(min(kap, 32) - cfg.get('hdepth', 12), 0))
            Hs += [It(f's_add_u32 s{sSO2}, s{sHB}, {4096*kap}', t0=t0, cond=lambda: 'h' in ok)]
            Hs += [It(f'buffer_load_dwordx4 a[{r+4*tl}:{r+4*tl+3}], v{vST}, {R4(RWS)}, s{sSO2} offen offset:{1024*tl} sc1', ('h', kap)) for tl in range(2)]
        sch.add('hld', Hs, prio=12)
        free0 = lambda: 'Xfin' in marks
        T0, T1 = AD + 8, AD + 9
        L = [It(f'v_and_b32 v{T0}, 15, v0', t0=marks['tstart'] - 40, cond=free0), f'v_lshrrev_b32 v{T1}, 1, v{T0}', f'v_bfe_u32 v{vAC(0, 0)}, v0, 4, 1',
             f'v_xor_b32 v{T1}, v{T1}, v{vAC(0, 0)}', f'v_lshlrev_b32 v{T1}, 4, v{T1}', f'v_lshl_add_u32 v{T0}, v{T0}, 7, v{T1}',
             f'v_lshrrev_b32 v{T1}, 5, v0', f'v_mul_u32_u24 v{T1}, 18432, v{T1}', f'v_add_u32 v{vAC(0, 0)}, v{T0}, v{T1}']
        L += [f'v_xor_b32 v{vAC(0, kp)}, {32*kp}, v{vAC(0, 0)}' for kp in range(1, 4)]
        L += [f'v_add_u32 v{vAC(1, kp)}, {2*SL}, v{vAC(0, kp)}' for kp in range(4)]
        sch.add('adr2', L, prio=45, key='adr2')
        if cfg.get('cpf', 1):
            sp = ph1.sPF
            L = [It(f's_lshl_b32 s{sp}, s{sTT}, 1', cond=lambda: 'set' in ok and 'ok' in sch.lin), f's_and_b32 s{sp+1}, s{sW}, 1',
                 f's_add_u32 s{sp}, s{sp}, s{sp+1}', f's_mul_i32 s{sp}, s{sp}, {41*128}', f's_mul_i32 s{sp+1}, s{sFQ}, {144*1152}', f's_add_u32 s{sp}, s{sp}, s{sp+1}']
            for k in range(cfg.get('wd_n', 1)):
                L += sch.touch(RC, f's{sp}', cond=sch.w17, t0=t_set + cfg.get('wdpf_t', 0) + k * cfg.get('wd_dt', 120), pause=cfg.get('wd_pause', 260)) + [f's_add_u32 s{sp}, s{sp}, {128*sch.wd_l}']
            L.append(FN(lambda: sch.lin.update(PFend=1)))
            sch.add('dmaP2', L, prio=8)
        M = []
        lo = n0 - 15
        seq = [(kap, u) for kap in range(32) for u in range(9)] + [(kap, u) for u in range(9) for kap in range(32, 36)]
        seen = set()
        for un, (kap, u) in enumerate(seq):
            i, kp = divmod(kap, 4)
            free = max(n0 + 2 * (un - PD), lo)
            if u == 0 and kp == 0:
                sch.reads.append(dict(k='B', vm=[('C', i)], free=free - 1, name=f'c{i}', fn=(lambda: sch.flush(lambda s_: s_.key == 'adr2', why='adr2')) if i == 0 else None))
            if kp == 1 and u == 1 and i < 6:
                sch.reads.append(dict(k='B', vm=[], free=free - 1))
            r = CB + 4 * (un % NCB)
            sch.reads.append(dict(k='R', txt=f'ds_read_b128 a[{r}:{r+3}], v{vAC(ph(i) >> 1, kp)} offset:{(ph(i) & 1)*SL + 2048*u}', tag=('CR', un), free=free, use=n0 + 2 * un))
            lds.reader(('C', i), ('CR', un))
            for tl in range(2):
                A = acc(tl, u); h = HB + 8 * (kap % NHB) + 4 * tl
                C = '0' if kap == 0 else f'a[{A}:{A+3}]'
                m = dict(txt=f'v_mfma_f32_16x16x32_bf16 a[{A}:{A+3}], a[{r}:{r+3}], a[{h}:{h+3}], {C}', lg=[('CR', un)] if tl == 0 else None)
                if kap not in seen:
                    seen.add(kap)
                    def pre(kap=kap):
                        if kap == 0:
                            sch.flush(lambda s_: s_.name in ('Sflag', 'Xflag'), why='cgemm start')
                            sch.flush(lambda s_: s_.key == 'poll', why='cgemm poll')
                            P.stamp('p2 start')
                        hs = next((s_ for s_ in sch.streams if s_.name == 'hld'), None)
                        while hs and any(it.tag == ('h', kap) for it in hs.q): sch.pop(hs); sch.forced += 1
                        sch.wait(vm=('h', kap))
                    m['pre'] = pre
                M.append(m)
        L = [It(f's_lshl_b32 s40, s{sTT}, 2', t0=n0 + 20), f's_add_u32 s40, s40, s{sW}', 's_lshl_b32 s40, s40, 3', f's_add_u32 s40, s40, s{sFQ}', 's_mul_i32 s40, s40, 9216',
             f's_add_u32 s40, s40, {AP_OFF}']
        for u in range(9):
            for tl in range(2):
                if u % 4 == 0: L.append(f's_add_u32 s{41+tl}, s40, {tl*36864 + 1024*u}')
                A = acc(tl, u)
                L.append(It(f'buffer_store_dwordx4 a[{A}:{A+3}], v{vST}, {R4(RWS)}, s{41+tl} offen offset:{1024*(u % 4)} sc1', 'AS', t0=n0 + 576 + 8 * u + 6 + tl + 5))
        sch.add('aps', L, prio=5)
        return M
    sch, lds, marks = ph1.gen_phase1(a, name, True, P, cfg, tails, late)
    sch.flush(why='end')
    cfg['fa_addr'](a, 43, 44)
    a.wait(vm='AS')
    I(f'buffer_store_dword v{vONE}, v{vL0}, {R4(RWS)}, s43 offen sc1')
    P.stamp('stored')
    return sch
```

```python
from collections import deque
from asmlib import *

def kind_of(txt):
    op = txt.split()[0]
    if op.startswith(('buffer_', 'global_')): return 'V'
    if op.startswith('ds_write_b128'): return 'W'
    if op.startswith('ds_'): return 'D'
    if op.startswith('s_'): return 'S'
    if op.replace('_e32', '').replace('_e64', '') in TRANS: return 'T'
    return 'P'

class It:
    __slots__ = ('k', 'txt', 'tag', 'cond', 't0', 'gapd', 'age', 'fn')
    def __init__(s, txt=None, tag=None, cond=None, t0=-99, gapd=0, k=None, age=0, fn=None):
        s.txt, s.tag, s.cond, s.t0, s.gapd, s.age, s.fn = txt, tag, cond, t0, gapd, age, fn
        s.k = k or kind_of(txt)
def WL(tag, age=6): return It(k='WL', tag=tag, age=age)
def WV(tag, age=100): return It(k='WV', tag=tag, age=age)
def FN(fn, cond=None): return It(k='F', fn=fn, cond=cond)
def BR(txt, label, gapd=2): return It(txt=txt, k='B', tag=label, gapd=gapd)

class Stream:
    def __init__(s, name, items, prio=50, key=None):
        s.name, s.prio, s.key = name, prio, key
        s.q = deque(It(i) if isinstance(i, str) else i for i in items)
        s.last = -99

class Sched:
    LGAGE = 6
    def __init__(s, a, P=None):
        s.a, s.P = a, P
        s.n = -1
        s.streams = []
        s.reads = deque()
        s.lg_n = [-99] * len(a.lg); s.vm_n = [-99] * len(a.vm)
        s.est = 0; s.gapk = []; s.forced = 0; s.hist = {}
        s.on_barrier = []; s.forcing = False; s.lock = None; s.dt_from = 1 << 30
        s.fine = (-9, -9)
        s.log = []; s.ages = []; s.vgap = lambda n: 0; s.last_v = -99; s.vpause = -99; s.extra = lambda n: 0
    def E(s, txt, tag=None, k=None):
        n0 = s.a.nops
        s.a.I(txt, tag)
        if s.a.nops != n0: s.gapk.append('S'); s.log.append((s.n, 'nop before ' + txt))
        s.gapk.append(k or kind_of(txt))
        if s.gapk[-1] == 'V' and 'load_dwordx4' in txt: s.last_v = s.n
        s._sync()
    def _sync(s):
        while len(s.lg_n) < len(s.a.lg): s.lg_n.append(s.n)
        while len(s.vm_n) < len(s.a.vm): s.vm_n.append(s.n)
    def wait(s, vm=None, lg=None):
        fine = vm is not None and s.fine[0] <= s.n < s.fine[1] and s.a.need_vm(vm) is not None
        if fine: s.P.stamp(f'{s.n}<')
        k = len(s.a.lines)
        s.a.wait(vm=vm, lg=lg)
        if fine: s.P.stamp(f'{vm}>'.replace(' ', ''))
        if len(s.a.lines) != k:
            s.gapk.append('S')
            if vm is not None: s.ages.append((s.n, vm, s.n - s.vm_n[s.a.vm_done - 1]))
            return True
        return False
    def close_gap(s):
        cur = 4; mm = 16; prev = None
        for k in s.gapk:
            if k == 'S': cur += 4
            elif k == 'P': cur = max(cur, 8) + 4
            elif k == 'T': cur = max(cur, 8) + 8
            elif k == 'D':
                t = max(cur, 8) + (4 if prev in ('P', 'T') else 0); cur = t + 4; mm = max(mm, t + 8)
            elif k == 'V': cur = cur + (4 if prev in ('P', 'T') else 0) + 12
            elif k == 'W': cur = max(cur, 8) + 20
            prev = k
        c = max(mm, cur)
        s.est += c
        key = ''.join(s.gapk) if len(s.gapk) < 8 else 'long'
        s.hist[key] = s.hist.get(key, 0) + 1
        if c > 16: s.log.append((s.n, f'gap {c}: ' + ''.join(s.gapk)))
        s.gapk = []
    def add(s, name, items, prio=50, key=None):
        st = Stream(name, items, prio, key); s.streams.append(st); s.streams.sort(key=lambda x: x.prio); return st
    def grp(s, items, cond=None, t0=-99, gapd=0):
        me = object()
        def acq(): s.lock = me
        def rel(): s.lock = None
        h = FN(acq, cond=lambda: s.lock is None and (cond is None or cond()))
        h.t0 = t0; h.gapd = gapd
        return [h] + list(items) + [FN(rel)]
    def _age(s, q, qn, tag):
        tags = tag if isinstance(tag, list) else [tag]
        idx = [i for i, t in enumerate(q) if t in tags]
        assert idx, tag
        return s.n - qn[idx[-1]]
    def shadow(s):
        i = next(i for i in range(s.a.vm_done, len(s.a.vm)) if s.a.vm[i] == 'TCH')
        return len(s.a.vm) - 1 - i
    def head(s, st):
        while st.q:
            it = st.q[0]
            if it.t0 > s.n or (it.cond and not it.cond()) or s.n - st.last < it.gapd: return None
            if it.k == 'F': st.q.popleft(); it.fn(); continue
            if it.k == 'WL':
                if s.a.need_lg(it.tag) is None: st.q.popleft(); continue
                return it if s._age(s.a.lg, s.lg_n, it.tag) >= it.age else None
            if it.k == 'WV':
                if s.a.need_vm(it.tag) is None: st.q.popleft(); continue
                if s.n < s.vpause and 'TCH' in s.a.vm and s.a.need_vm('TCH') is not None and s.a.need_vm(it.tag) < s.shadow(): return None
                return it if s._age(s.a.vm, s.vm_n, it.tag) >= it.age else None
            return it
        return None
    def pick(s, kinds, small=False):
        for st in list(s.streams):
            it = s.head(st)
            if it is not None and it.k in kinds and not (small and 'load_dwordx4' in it.txt): return st
        return None
    def pop(s, st):
        it = st.q.popleft(); st.last = s.n
        if it.k == 'WL': s.wait(lg=it.tag)
        elif it.k == 'WV': s.wait(vm=it.tag)
        elif it.k == 'F': it.fn()
        elif it.k == 'B':
            for t in it.txt.split('\n'): s.E(t, k='S')
            s.a.label(it.tag)
        else:
            s.E(it.txt, it.tag)
            if it.txt == 's_barrier': s._bar()
        while st.q and st.q[0].k == 'F' and st.q[0].cond is None: st.q.popleft().fn()
    def flush(s, pred=lambda st: True, why=''):
        s.forcing = True
        nl = sum(len(st.q) for st in s.streams if pred(st))
        if nl: s.log.append((s.n, f'flush {why}: {nl} items'))
        while True:
            live = [st for st in s.streams if st.q and pred(st)]
            if not live: break
            prog = False
            for st in live:
                it = st.q[0]
                if it.cond and not it.cond(): continue
                if it.k == 'B': s.E('s_nop 1')
                s.pop(st); s.forced += 1; prog = True
            assert prog, (why, [(st.name, st.q[0].txt, st.q[0].k) for st in live])
        s.forcing = False
        s.streams = [st for st in s.streams if st.q]
    def popn(s, name, n):
        for st in s.streams:
            if st.name == name:
                while st.q and n > 0: s.pop(st); n -= 1
    def _bar(s):
        for f in s.on_barrier: f()
    def need_wait(s, tags):
        return tags and s.a.need_lg(tags) is not None
    def lg_wait(s, tags, vm=None, drain=False):
        a = s.a
        idx = -1
        if tags: idx = a._last(a.lg, tags)
        old = [i for i in range(a.lg_done, len(a.lg)) if s.n - s.lg_n[i] >= s.LGAGE]
        if old: idx = max(idx, old[-1])
        if drain: idx = len(a.lg) - 1
        parts = []
        if vm:
            n = a.need_vm(vm)
            if n is not None:
                n = min(n, 63); parts.append(f'vmcnt({n})'); a.vm_done = len(a.vm) - n
                s.ages.append((s.n, vm[0], s.n - s.vm_n[a.vm_done - 1]))
        if idx >= a.lg_done:
            n = min(len(a.lg) - 1 - idx, 15); parts.append(f'lgkmcnt({n})'); a.lg_done = len(a.lg) - n
        if parts: s.E('s_waitcnt ' + ' '.join(parts))
    def read_ok(s):
        if not s.reads: return False
        r = s.reads[0]
        return r['free'] <= s.n and (not r.get('cond') or r['cond']())
    def emit_read(s):
        r = s.reads.popleft()
        if r['k'] == 'R': s.E(r['txt'], r['tag'])
        return r
    def force_reads(s, tags):
        while any(r['k'] == 'R' and r['tag'] in tags for r in s.reads):
            r = s.reads[0]
            if r['k'] != 'R': s.do_barrier(None)
            else: s.emit_read()
            s.forced += 1
    def do_barrier(s, nxt):
        r = s.reads.popleft()
        for t in r['vm'] + r.get('iss', []) + [None]:
            if t is None:
                if r.get('pre'): r['pre']()
                break
            for st in s.streams:
                while any(it.tag == t and it.k == 'V' for it in st.q):
                    it = st.q[0]
                    if it.k == 'F' and s.lock is not None:
                        for o in s.streams:
                            if o is not st and o.name.startswith('dma'):
                                while s.lock is not None and o.q and o.q[0].k != 'F': s.pop(o); s.forced += 1
                    assert not (it.cond and not it.cond()), ('barrier needs', t, st.name, it.txt)
                    s.pop(st); s.forced += 1; s.log.append((s.n, f'forced dma for {t}'))
        fine = s.fine[0] <= s.n < s.fine[1]
        if fine: s.P.stamp(f'{s.n}<')
        s.lg_wait(nxt if s.need_wait(nxt) else None, vm=r['vm'] or None, drain=r.get('drain', False))
        if fine: s.P.stamp('w')
        if r['k'] == 'B':
            s.E('s_barrier'); s._bar()
        if fine: s.P.stamp('b' + ''.join(str(x) for x in (r['vm'] or [('',)])[0]) + '>')
        elif s.P and r.get('name') and s.fine[1] < 0: s.P.stamp(r['name'])
        if r.get('fn'): r['fn']()
    def gap(s, nxt, urgent=10):
        if nxt: s.force_reads(nxt)
        nw = s.need_wait(nxt)
        rd = s.read_ok()
        if rd and s.reads[0]['k'] != 'R':
            s.do_barrier(nxt)
            if len(s.gapk) <= 2:
                st = s.pick('P')
                if st: s.pop(st)
            return
        if not nw and not s.gapk:
            st = s.pick('V', small=True) or (s.pick('V') if (s.n - s.last_v >= s.vgap(s.n) and s.n >= s.vpause) else None)
            if st and not (rd and s.reads[0]['use'] - s.n <= urgent):
                s.pop(st); return
        if nw: s.lg_wait(nxt)
        elif not s.gapk:
            st = s.pick(('S', 'WL', 'WV', 'B'))
            if st: s.pop(st)
        if rd:
            s.emit_read()
            st = s.pick('P') or (s.pick('T') if s.n >= s.dt_from else None)
            if st: s.pop(st)
            return
        st = s.pick(('T', 'D', 'W'))
        if st:
            k = st.q[0].k; s.pop(st)
            if k == 'D':
                st = s.pick('P')
                if st: s.pop(st)
            return
        st = s.pick('P')
        if st:
            s.pop(st)
            st = s.pick(('P', 'S', 'WL', 'WV'))
            if st: s.pop(st)
            return
        for _ in range(2):
            st = s.pick(('S', 'WL', 'WV', 'B'))
            if st: s.pop(st)
    def run(s, M):
        for i, m in enumerate(M):
            if m.get('pre'): m['pre']()
            if m.get('lg'):
                s.force_reads(m['lg'])
                if s.need_wait(m['lg']): s.lg_wait(m['lg'])
            s.close_gap()
            s.n += 1
            n0 = s.a.nops
            s.a.I(m['txt'])
            if s.a.nops != n0: s.log.append((s.n, 'nop before mfma ' + m['txt'])); s.est += 4
            if m.get('post'): m['post']()
            s.gap(M[i + 1].get('lg') if i + 1 < len(M) else None)
            for _ in range(s.extra(s.n)):
                st = s.pick(('P', 'T'))
                if st: s.pop(st)
        s.streams = [st for st in s.streams if st.q]
    def report(s, title):
        print(f'[{title}] mfma {s.n+1} est {s.est} ideal {16*(s.n+1)} forced {s.forced} left {[(st.name, len(st.q)) for st in s.streams if st.q]}')
        print('    ages', s.ages)
        print('   ', sorted(s.hist.items(), key=lambda x: -x[1])[:24])
```

```python
import sys
from asmlib import *
from lay import *
from prof import Prof
import ph1
NAME = 'gated_mix__ssm_conv_s5__swiglu_ffn__prompt_kernel'
HDR = open('gated_mix__ssm_conv_s5__swiglu_ffn__prompt.s.ref').read().split('; Override launch')[0]

def fp_addr(a, sg, d, t):
    I = a.I
    I(f's_mul_i32 s{d}, s{sTH}, 24')
    I(f's_add_u32 s{d}, s{d}, s{sIDX}')
    I(f's_lshl_b32 s{d}, s{d}, 2')
    I(f's_xor_b32 s{t}, s{sFQ}, {sg}')
    I(f's_add_u32 s{d}, s{d}, s{t}')
    I(f's_lshl_b32 s{d}, s{d}, 2')
    I(f's_add_u32 s{d}, s{d}, s{sW}')
    I(f's_lshl_b32 s{d}, s{d}, 6')
    I(f's_add_u32 s{d}, s{d}, {FP_OFF + 4*(sg-1)}')
def fa_addr(a, d, t):
    I = a.I
    I(f's_lshl_b32 s{d}, s{sTH}, 3')
    I(f's_add_u32 s{d}, s{d}, s{sIDX}')
    I(f's_sub_u32 s{d}, s{d}, 24')
    I(f's_lshl_b32 s{d}, s{d}, 2')
    I(f's_add_u32 s{d}, s{d}, s{sW}')
    I(f's_lshl_b32 s{d}, s{d}, 5')
    I(f's_add_u32 s{d}, s{d}, s{sFQ}')
    I(f's_lshl_b32 s{d}, s{d}, 2')
    I(f's_add_u32 s{d}, s{d}, {FA_OFF}')

def build(path, prof, cfg, name=NAME, as_list=False, verbose=False):
    cfg = dict(cfg, fp_addr=fp_addr, fa_addr=fa_addr)
    a = Asm(); I = a.I
    a.raw(f'.p2align 8\n.globl {name}\n.type {name},@function\n{name}:')
    P0 = Prof(a, prof, ph1.vPROF)
    ph1.gen_entry(a, name, P0, cfg)
    tails = []
    names = {}
    for B in (False, True):
        P = P0.fork()
        if cfg.get('p1only'):
            sch, lds, marks = ph1.gen_phase1(a, name, B, P, cfg, tails)
            sch.flush(why='end')
        else:
            import ph2a, ph2b
            sch = (ph2b if B else ph2a).gen(a, name, P, cfg, tails)
        P.dump(2, 50)
        I('s_endpgm')
        names['B' if B else 'A'] = P.names
        if verbose:
            for l in sch.log: print('   ', l)
    for t in tails: a.raw(t)
    a.label(f'{name}_done')
    I('s_endpgm')
    launch = f'; @launch {"kernel=" + name + " " if as_list else ""}grid=(256,1,1) block=(256,1,1) lds=163840'
    s = HDR + launch + '\n.amdgcn_target "amdgcn-amd-amdhsa--gfx950"\n.text\n' + a.text() + '\n.section .rodata,"a"\n' + kd(name, 512, 256) + '\n'
    open(path, 'w').write(s)
    print(path, 'lines', len(a.lines), 'nops', a.nops, 'bytes', len(s))
    return names

if __name__ == '__main__':
    import json
    cfgs = [eval(x) for x in sys.argv[1:] if not x.startswith('-')] or [{}]
    for i, cfg in enumerate(cfgs):
        names = build(f'f{i+1}.s', 2 if cfg.get('rt') else 1, cfg, name='f_kernel', as_list=True, verbose='-v' in sys.argv)
        names['cfg'] = repr(cfg)
        json.dump(names, open(f'f{i+1}.json', 'w'))
        import io, contextlib
        with contextlib.redirect_stdout(io.StringIO()): build(f'r{i+1}.s', 0, cfg)
```
